```python
import torch

def _softmax(x, axis=-1):
    return torch.softmax(x, dim=axis)
def _gelu(x):
    return torch.nn.functional.gelu(x, approximate="tanh")
def _silu(x):
    return torch.nn.functional.silu(x)
def _sigmoid(x):
    return torch.sigmoid(x)
def _layernorm(x, axis=-1, eps=1e-5):
    m = x.mean(dim=axis, keepdim=True)
    v = x.var(dim=axis, keepdim=True, unbiased=False)
    return (x - m) / torch.sqrt(v + eps)
def _scatter_add(tgt, idx, src, axis=0):
    return tgt.clone().index_add_(axis, idx, src)
def _segment_sum(src, seg, n):
    out = torch.zeros((n,) + src.shape[1:], dtype=src.dtype)
    return out.index_add_(0, seg, src)
def _pad(x, pw):
    flat = tuple(v for pair in reversed(pw) for v in pair)
    return torch.nn.functional.pad(x, flat)

kernel_name = 'recurrent_scan__sliding_block_cached__glu_gated_reglu__decode'

def setup_inputs():

    _w = (lambda a: (lambda t: t.to(torch.bfloat16) if t.is_floating_point() else t)(torch.as_tensor(a)))
    def _A_setup():
        B, Sq, D = 4, 1, 448
        Hq, Hkv, Sk, Dh = 16, 8, 4096, 256
        assert Hq % Hkv == 0, (Hq, Hkv)
        return {
            "x": _w((lambda *s: torch.randn(*s, dtype=torch.bfloat16) * 0.05)(B, Sq, D)),
            "k_cache": _w((lambda *s: torch.randn(*s, dtype=torch.bfloat16) * 1.6)(B, Hkv, Sk, Dh)),
            "v_cache": _w((lambda *s: torch.randn(*s, dtype=torch.bfloat16) * 1.6)(B, Hkv, Sk, Dh)),
            "wq": _w((lambda *s: torch.randn(*s, dtype=torch.bfloat16) * 1.6)(D, Hq * Dh) * (D ** -0.5)),
            "wo": _w((lambda *s: torch.randn(*s, dtype=torch.bfloat16) * 1.6)(Hq * Dh, D) * ((Hq * Dh) ** -0.5)),
        }
    _A_in = _A_setup()

    def _B_setup():
        B, S, D, F = 4, 1, 448, 1792
        return {
            "x": _w((lambda *s: torch.randn(*s, dtype=torch.bfloat16) * 0.05)(B, S, D)),
            "W_gate": _w((lambda *s: torch.randn(*s, dtype=torch.bfloat16) * 0.2)(D, F) * (2.0 / D) ** 0.5),
            "W_up": _w((lambda *s: torch.randn(*s, dtype=torch.bfloat16) * 0.2)(D, F) * (2.0 / D) ** 0.5),
            "W_down": _w((lambda *s: torch.randn(*s, dtype=torch.bfloat16) * 0.2)(F, D) * (1.0 / F) ** 0.5),
        }
    _B_in = _B_setup()

    return {
        "A_x": _A_in["x"],
        "A_k_cache": _A_in["k_cache"],
        "A_v_cache": _A_in["v_cache"],
        "A_wq": _A_in["wq"],
        "A_wo": _A_in["wo"],
        "B_x": _B_in["x"],
        "B_W_gate": _B_in["W_gate"],
        "B_W_up": _B_in["W_up"],
        "B_W_down": _B_in["W_down"],
    }

def reference(A_x, A_k_cache, A_v_cache, A_wq, A_wo, B_x, B_W_gate, B_W_up, B_W_down):
    def _A_ref(x, k_cache, v_cache, wq, wo):
        B, Sq, D = x.shape
        Hq, Dh = 16, 256
        Hkv, Sk = k_cache.shape[1], k_cache.shape[2]
        W = min(4096, max(256, Sk // 4))
        rep = Hq // Hkv
        q = (lambda x, *d: x.permute(*d))((x @ wq).reshape(B, Sq, Hq, Dh), 0, 2, 1, 3)
        k = (lambda x, n, axis: torch.repeat_interleave(x, n, dim=axis))(k_cache[:, :, Sk - W:, :], rep, axis=1)
        v = (lambda x, n, axis: torch.repeat_interleave(x, n, dim=axis))(v_cache[:, :, Sk - W:, :], rep, axis=1)
        scores = torch.einsum("bhqd,bhkd->bhqk", q, k) * (Dh ** -0.5)
        p = _softmax(scores, axis=-1)
        o = torch.einsum("bhqk,bhkd->bhqd", p, v)
        return (lambda x, *d: x.permute(*d))(o, 0, 2, 1, 3).reshape(B, Sq, Hq * Dh) @ wo

    def _B_ref(x, W_gate, W_up, W_down):
        gate = torch.einsum("bsd,df->bsf", x, W_gate)
        up = torch.einsum("bsd,df->bsf", x, W_up)
        gate = gate * (lambda x, dt: x.to(dt))(gate > 0, gate.dtype)
        h = gate * up
        return torch.einsum("bsf,fd->bsd", h, W_down)

    x = A_x
    xn = _layernorm(x, axis=-1)
    s = _A_ref(xn, A_k_cache, A_v_cache, A_wq, A_wo)
    g = _silu(_B_ref(xn, B_W_gate, B_W_up, B_W_down))
    return x + s * g
```

```python
import re
REG_RE = re.compile(r'\b([vsa])\[(\d+):(\d+)\]|\b([vsa])(\d+)\b|\b(vcc|exec|m0|scc)\b')
TRANS = ('v_exp_', 'v_log_', 'v_rcp_', 'v_rsq_', 'v_sqrt_', 'v_sin_', 'v_cos_')

def regs_of(op):
    out = set()
    for m in REG_RE.finditer(op):
        if m.group(1):
            for i in range(int(m.group(2)), int(m.group(3)) + 1): out.add(m.group(1) + str(i))
        elif m.group(4): out.add(m.group(4) + m.group(5))
        else: out.add(m.group(6))
    return out

def split_ops(rest):
    ops = []; depth = 0; cur = ''
    for ch in rest:
        if ch in '[(': depth += 1
        if ch in '])': depth -= 1
        if ch == ',' and depth == 0:
            ops.append(cur.strip()); cur = ''
        else: cur += ch
    if cur.strip(): ops.append(cur.strip())
    return ops

class Ins:
    def __init__(self, text):
        self.text = text
        t = text.split(';')[0].strip()
        self.label = t.endswith(':')
        self.directive = t.startswith('.')
        parts = t.split(None, 1)
        self.mn = parts[0] if parts else ''
        rest = parts[1] if len(parts) > 1 else ''
        ops = split_ops(rest)
        self.ops = ops
        mn = self.mn
        self.mfma = mn.startswith('v_mfma')
        self.valu = mn.startswith('v_') and not self.mfma
        self.trans = mn.startswith(TRANS)
        self.dpp = '_dpp' in mn
        self.perml = mn.startswith('v_permlane')
        self.readl = mn.startswith(('v_readlane', 'v_readfirstlane'))
        self.vmem = mn.startswith(('buffer_', 'global_', 'flat_'))
        self.ds = mn.startswith('ds_')
        self.salu = mn.startswith('s_')
        self.ldsdma = self.vmem and (' lds' in (' ' + rest + ' ') or 'load_lds' in mn)
        self.states = 1
        if mn == 's_nop': self.states = int(ops[0]) + 1
        if self.label or self.directive or mn == '': self.states = 0
        d = set(); u = set()
        allr = [regs_of(o) for o in ops]
        if self.label or self.directive or not mn: pass
        elif self.vmem:
            if 'store' in mn or 'atomic' in mn or self.ldsdma:
                for r in allr: u |= r
            else:
                d |= allr[0]
                for r in allr[1:]: u |= r
            if self.ldsdma: u.add('m0')
            u.add('exec')
        elif self.ds:
            if mn.startswith(('ds_read', 'ds_bpermute', 'ds_permute', 'ds_swizzle')) or '_rtn' in mn:
                d |= allr[0]
                for r in allr[1:]: u |= r
            else:
                for r in allr: u |= r
        elif self.perml:
            d |= allr[0] | allr[1]; u |= allr[0] | allr[1]
        elif mn.startswith(('s_cmp', 's_cbranch', 's_branch', 's_waitcnt', 's_nop', 's_sleep', 's_barrier', 's_setprio', 's_endpgm', 's_bitcmp')):
            for r in allr: u |= r
            if 'vcc' in mn: u.add('vcc')
        else:
            if allr: d |= allr[0]
            for r in allr[1:]: u |= r
            if mn.startswith(('v_fmac', 'v_dot2c', 'v_pk_fmac', 'v_writelane')) or self.dpp: u |= allr[0]
            if mn.startswith(('v_add_co', 'v_addc_co', 'v_sub_co', 'v_subb_co')): d |= allr[1]
            if 'saveexec' in mn: d.add('exec'); u.add('exec')
        self.d = d; self.u = u
        self.wide_store = self.vmem and ('store' in mn) and ('x3' in mn or 'x4' in mn)
        if self.mfma:
            self.srcC = allr[3] if len(allr) > 3 else set()
            self.srcAB = allr[1] | allr[2]
            self.passes = 8 if '32x32x16' in mn or '32x32x8' in mn else 4
            if 'x4_f32' in mn and '16x16' in mn: self.passes = 8

def need(p, c):
    n = 0
    vd = {r for r in p.d if r[0] in 'va' and r != 'vcc'}
    sd = {r for r in p.d if r[0] == 's' or r == 'vcc'}
    if p.valu:
        if c.dpp and vd & c.u: n = max(n, 2)
        if c.perml and vd & c.u: n = max(n, 2)
        if c.readl and vd & c.u: n = max(n, 1)
        if c.mfma and vd & c.u: n = max(n, 2)
        if p.trans and (c.valu or c.mfma) and vd & c.u: n = max(n, 1 if not c.mfma else 2)
        if c.vmem and sd & c.u: n = max(n, 5)
        if c.valu and sd & c.u: n = max(n, 4 if c.readl or c.mn.startswith('v_writelane') else 2)
        if c.salu and sd & c.u: n = max(n, 1)
    if p.salu and 'm0' in p.d and c.ldsdma: n = max(n, 1)
    if p.wide_store:
        data = regs_of(p.ops[0]) if p.mn.startswith('buffer') else regs_of(p.ops[1])
        if c.d & data: n = max(n, 2)
    if p.mfma:
        big = {4: 8, 8: 12}[p.passes]; part = {4: 6, 8: 10}[p.passes]; war = {4: 3, 8: 7}[p.passes]
        if c.mfma:
            if p.d & c.srcAB: n = max(n, big)
            if p.d & c.srcC and not (p.d == c.srcC and p.passes == c.passes): n = max(n, part)
        elif (c.valu or c.vmem or c.ds) and (p.d & (c.u | c.d)): n = max(n, big)
        if c.valu and (p.srcC & c.d): n = max(n, war)
    return n

class Asm:
    def __init__(self): self.L = []
    def __call__(self, text):
        for line in text.split('\n'):
            line = line.strip()
            if line: self.L.append(line)
    def finalize(self):
        out = []; hist = []
        for line in self.L:
            if line.startswith(';'):
                out.append(line); continue
            c = Ins(line)
            if c.states > 0:
                dist = 0; req = 0
                for p in reversed(hist):
                    if dist >= 13: break
                    req = max(req, need(p, c) - dist)
                    dist += p.states
                while req > 0:
                    k = min(req, 16)
                    nop = Ins(f's_nop {k-1}'); out.append(f'    s_nop {k-1}'); hist.append(nop); req -= k
                hist.append(c)
                if c.mn in ('s_branch', 's_endpgm'): hist = []
            out.append(line if (c.label or c.directive) else '    ' + line)
        return '\n'.join(out) + '\n'
```

```python
import sys, struct
from asmlib import Asm
NAME = "recurrent_scan__sliding_block_cached__glu_gated_reglu__decode"
def fbits(x): return struct.unpack('<I', struct.pack('<f', x))[0]

V_L, KW_L, KS_L, W1_L, MISC = 0, 65536, 122880, 131072, 159744
XN_L = V_L
PROG = 0
FL_A, FL_Q, FL_QK, FL_PUB, FL_X, FL_WO = 256, 260, 264, 268, 272, 276
WO1_L = 65536
HB = 320
Q_M = 512
RED = 1536
SC = 3584
P_L = KS_L
OB_L = KS_L + 2048
LDS_BYTES = 163840
PJF, PJS, OBF, OBS, PBUF, YBUF, DIAG = 0x290000, 0x2d0000, 0x60000, 0x100000, 0x190000, 0x210000, 0x320000
PSTR = 2048
PJH = 4 * 30720
OSTR = 2176
WS_REC = 0x400000
LIMIT = 20000
EV_K, EV_WO = 1, 1

def gen(keep=None, W=33, W2=41, pol_kv='nt', pol_w='nt', pol_w1='nt', diag=False, prefetch=2, rotk=5, nfast=40,
        qsleep=0, osleep=0, fake=0, slowcopy=1, npre=1, W3=41, touch=2, Wk=None, otouch=1, wdpos=6, Wi=45, Wl=45, rota=1, rotc=0, tail='wo1', wo0pos=8, mlat=1, yat=2, fgap=1, prestore=2, fsleep=0, pjshuf=0, kfirst=2, order='lhc', exp='', ypubat='V3', touchat='q', mask=1, slowat='V3', qdelay=0, Wk0=None, nk0w=8, nafter=8, wo1g=12, wdtail='', wdn=8, vbar=1, pipe=1, pgap=1, skipslow=12, sksleep=4):
    A = Asm()
    WOR = 128; MO = 40
    uid = [0]
    def lab(p):
        uid[0] += 1; return f"L_{p}_{uid[0]}"
    stamps = {'c': [], 'l': [], 'h': []}
    def stamp(kind, name):
        if diag and (keep is None or name in keep):
            k = len(stamps[kind]); stamps[kind].append(name)
            A(f"s_memrealtime s[{72+2*k}:{73+2*k}]")
    def dump_stamps(kind):
        if not diag: return
        n = len(stamps[kind])
        A("s_waitcnt lgkmcnt(0)\ns_mov_b64 exec, 1")
        A("s_lshl_b32 s56, s2, 3\ns_add_u32 s56, s56, s3\ns_lshl_b32 s56, s56, 7")
        A(f"s_add_u32 s56, s56, {DIAG}\nv_mov_b32 v1, s56")
        for k in range(n):
            A(f"v_mov_b32 v2, s{72+2*k}\nv_mov_b32 v3, s{73+2*k}")
            A(f"buffer_store_dwordx2 v[2:3], v1, s[36:39], 0 offen offset:{8*k}\ns_nop 1")
        A("s_waitcnt vmcnt(0)")
    def srd(d, p, nrec, sub=None):
        if sub is not None: A(f"s_sub_u32 s{d}, s{p}, {sub}\ns_subb_u32 s{d+1}, s{p+1}, 0")
        else: A(f"s_mov_b32 s{d}, s{p}\ns_mov_b32 s{d+1}, s{p+1}")
        A(f"s_mov_b32 s{d+2}, {nrec}\ns_mov_b32 s{d+3}, 0x20000")
    def spin(vM, off, n, vt='v1', st='s56', sleep=1):
        l = lab('spin'); d = lab('spind')
        A(f"{l}:\nds_read_b32 {vt}, {vM} offset:{off}\ns_waitcnt lgkmcnt(0)\nv_readfirstlane_b32 {st}, {vt}")
        A(f"s_cmp_ge_u32 {st}, {n}")
        if sleep: A(f"s_cbranch_scc1 {d}\ns_sleep {sleep}\ns_branch {l}\n{d}:")
        else: A(f"s_cbranch_scc0 {l}")
    def signal(vM, off, vOne):
        A(f"s_mov_b64 exec, 1\nds_add_u32 {vM}, {vOne} offset:{off}\ns_mov_b64 exec, -1")
    def allred(op, x, t, rors):
        for r in rors: A(f"{op}_dpp {x}, {x}, {x} row_ror:{r} row_mask:0xf bank_mask:0xf")
        for sw in ('16', '32'): A(f"v_mov_b32 {t}, {x}\nv_permlane{sw}_swap_b32 {x}, {t}\n{op} {x}, {x}, {t}")
    def fspoll(issue, check, sfast, delta, sleep, onswitch=None, st1=None, first=None):
        l = lab('fp'); d = lab('fpd')
        A(f"s_mov_b32 s60, 0\ns_mov_b32 s61, {sfast}")
        if first:
            l2 = lab('fq'); issue('s61'); first(); A(f"s_branch {l2}\n{l}:"); issue('s61'); A(f"{l2}:\ns_waitcnt vmcnt(0)")
        else:
            A(f"{l}:"); issue('s61'); A("s_waitcnt vmcnt(0)")
        if st1 and diag and keep is None:
            sk = lab('st'); A(f"s_cmp_eq_u32 s60, 0\ns_cbranch_scc0 {sk}"); stamp(*st1); A(f"{sk}:")
        check()
        if fake: A("s_mov_b64 s[6:7], 0")
        A(f"s_cmp_eq_u64 s[6:7], 0\ns_cbranch_scc1 {d}")
        A(f"s_add_u32 s60, s60, 1\ns_cmp_eq_u32 s60, {nfast}\ns_cselect_b32 s59, {delta}, 0\ns_add_u32 s61, s61, s59")
        if onswitch:
            sk = lab('sw'); A(f"s_cmp_eq_u32 s60, {nfast}\ns_cbranch_scc0 {sk}"); onswitch(); A(f"{sk}:")
        if sleep: A(f"s_sleep {sleep}")
        A(f"s_mov_b64 exec, s[6:7]\ns_cmp_lt_u32 s60, {LIMIT}\ns_cbranch_scc1 {l}\n{d}:\ns_mov_b64 exec, -1")
    def tagcheck(r, dst, t0='v1', t1='v4'):
        A(f"v_perm_b32 {t0}, v{r+1}, v{r}, s66\nv_perm_b32 {t1}, v{r+3}, v{r+2}, s67\nv_or_b32 {t0}, {t0}, {t1}")
        A(f"v_cmp_ne_u32 {dst}, s32, {t0}")
    TAGSEL = "s_mov_b32 s62, 0x07060500\ns_mov_b32 s63, 0x07060501\ns_mov_b32 s68, 0x07060502\ns_mov_b32 s69, 0x07060503"
    TS = ['s62', 's63', 's68', 's69']
    CHKSEL = "s_mov_b32 s66, 0x0c0c0400\ns_mov_b32 s67, 0x04000c0c"
    MKTAG = "s_mul_i32 s32, s32, 1664525\ns_add_u32 s32, s32, 1013904223"

    A(f"; @launch grid=(256,1,1) block=(384,1,1) lds={LDS_BYTES}")
    A('.amdgcn_target "amdgcn-amd-amdhsa--gfx950"')
    A(f".text\n.globl {NAME}_kernel\n.p2align 8\n.type {NAME}_kernel,@function\n{NAME}_kernel:")
    if diag: A("s_memrealtime s[70:71]")
    A("s_cmp_ge_u32 s2, 256\ns_cbranch_scc1 L_end")
    A("s_load_dwordx16 s[4:19], s[0:1], 0\ns_load_dwordx8 s[20:27], s[0:1], 64")
    A("v_lshrrev_b32 v1, 6, v0\nv_and_b32 v0, 63, v0\nv_readfirstlane_b32 s3, v1")
    A("s_and_b32 s28, s2, 7\ns_lshr_b32 s29, s2, 3\ns_and_b32 s30, s29, 3\ns_lshr_b32 s31, s29, 2")
    FDEC = "s_lshl_b32 s99, s28, 2\ns_mul_i32 s100, s28, 3\ns_add_u32 s100, s100, 4\ns_min_u32 s99, s99, s100"
    FDEC2 = "s_lshl_b32 s99, s99, 6\ns_cmp_lt_u32 s28, 4\ns_cselect_b32 s101, 32, 24\ns_mul_i32 s100, s101, s31\ns_add_u32 s100, s100, s99"
    vK = [8 + i for i in range(8)]; vV = [16 + i for i in range(4)]; vW = [20 + i for i in range(7)]
    nk0 = 4 * npre
    def part_l():
        A("L_lstart:\ns_setprio 3")
        A("v_lshrrev_b32 v1, 5, v0\nv_and_b32 v2, 31, v0\nv_xor_b32 v6, v2, v1\nv_lshlrev_b32 v6, 4, v6")
        A(f"v_lshl_add_u32 v{vK[0]}, v1, 9, v6")
        for i in range(1, 8 if npre > 1 else 4): A(f"v_xor_b32 v{vK[i]}, {(2*i) << 4}, v{vK[0]}")
        A(f"s_lshl_b32 s57, s30, 8\ns_lshl_b32 s58, s28, 5\ns_add_u32 s57, s57, s58\ns_add_u32 s57, s57, s31\ns_add_u32 s57, s57, 24\ns_lshl_b32 s61, s57, 16")
        A("s_and_b32 s66, s29, 15\ns_lshl_b32 s66, s66, 12")
        A(f"s_movk_i32 s63, 4096\ns_add_u32 s64, s61, s66\ns_mov_b32 s42, {64 << 20}\ns_mov_b32 s43, 0x20000")
        A("s_waitcnt lgkmcnt(0)\ns_mov_b64 s[40:41], s[6:7]")
        for g in range(npre): kvgroup(g, True, Wi)
        A("s_branch L_loader")
    def part_h():
        A("L_hstart:")
        if prefetch:
            A("s_getpc_b64 s[56:57]\nL_pc:\nv_lshlrev_b32 v1, 7, v0\nglobal_load_dword v40, v1, s[56:57]\nv_add_u32 v1, 8192, v1")
            A("v_cmp_gt_u32 vcc, L_codeend-L_pc, v1\ns_mov_b64 exec, vcc\nglobal_load_dword v40, v1, s[56:57]\ns_mov_b64 exec, -1")
        A(f"v_lshlrev_b32 v2, 3, v0\nv_mov_b32 v4, 0\nv_mov_b32 v5, 0\nv_add_u32 v2, {MISC}, v2\nds_write_b64 v2, v[4:5]\ns_waitcnt lgkmcnt(0)\ns_barrier\ns_branch L_helper")
    def part_c():
        A("L_cstart:")
        A("v_lshrrev_b32 v5, 4, v0\nv_lshrrev_b32 v1, 5, v0\nv_bfe_u32 v12, v0, 3, 2\nv_lshl_add_u32 v122, v1, 3, v12\nv_and_b32 v1, 7, v0\nv_lshlrev_b32 v12, 1, v5\nv_xor_b32 v1, v1, v12\nv_lshlrev_b32 v123, 4, v1\nv_lshlrev_b32 v121, 4, v0")
        A(FDEC)
        A("s_add_u32 s56, s99, s31\ns_sub_u32 s56, s56, 4\ns_lshl_b32 s59, s28, 3\ns_lshr_b32 s60, s29, 1\ns_add_u32 s59, s59, s60\ns_movk_i32 s58, 3584\ns_cmp_lt_u32 s29, 16")
        A("s_cselect_b32 s33, s59, s56\ns_cselect_b32 s58, 8192, s58\ns_lshl_b32 s56, s33, 7\ns_and_b32 s57, s29, 1")
        A("s_mul_i32 s59, s57, 56\ns_and_b32 s60, s3, 1\ns_lshl_b32 s60, s60, 2\ns_add_u32 s59, s59, s60\ns_lshr_b32 s60, s3, 1\ns_add_u32 s59, s59, s60\ns_lshl_b32 s59, s59, 2\ns_mul_i32 s61, s59, s58")
        A("v_mad_u32_u24 v122, v122, s58, v123\ns_mul_i32 s46, s58, 448\ns_sub_u32 s46, s46, s56\ns_and_b32 s34, s28, 4\ns_add_u32 s34, s34, s29\ns_cmp_lt_u32 s34, 32\ns_cselect_b32 s46, s46, 0\ns_mov_b32 s47, 0x20000")
        A(f"s_lshl_b32 s62, s3, 10\ns_add_u32 m0, s62, {W1_L}\ns_lshl_b32 s59, s58, 5\ns_movk_i32 s42, 896\ns_mov_b32 s43, 0x20000\ns_movk_i32 s60, 4096\ns_mul_i32 s62, s3, s42")
        A("s_waitcnt lgkmcnt(0)")
        A("s_bitcmp0_b32 s29, 1\ns_cselect_b64 s[44:45], s[16:17], s[18:19]\ns_cmp_lt_u32 s29, 16\ns_cselect_b64 s[44:45], s[10:11], s[44:45]")
        A("s_add_u32 s40, s4, s62\ns_addc_u32 s41, s5, 0\ns_add_u32 s44, s44, s56\ns_addc_u32 s45, s45, 0")
        A("buffer_load_dwordx4 v[8:11], v121, s[40:43], 0 offen")
        for i in range(7):
            A(f"buffer_load_dwordx4 v122, s[44:47], s61 offen {pol_w1} lds")
            if i < 6: A("s_add_u32 m0, m0, s60\ns_add_u32 s61, s61, s59")
        A("s_barrier\ns_branch L_compute")
    def late_setup():
        A(FDEC); A(FDEC2)
        A(f"v_lshlrev_b32 v3, 2, v0\nv_add_u32 v3, {MISC}, v3\nv_mov_b32 v4, {MISC}")
        A(f"v_lshlrev_b32 v6, 1, v1\nv_xor_b32 v6, v6, v2\nv_lshlrev_b32 v6, 4, v6\nv_lshl_add_u32 v{vV[0]}, v1, 9, v6")
        for i in range(1, 4): A(f"v_xor_b32 v{vV[i]}, {(4*i) << 4}, v{vV[0]}")
        A("s_movk_i32 s58, 1171\ns_movk_i32 s59, 896")
        for m in range(7):
            A(f"v_add_u32 v1, {64*m}, v0\nv_mul_u32_u24 v2, s58, v1\nv_lshrrev_b32 v2, 16, v2")
            A(f"v_mul_u32_u24 v6, 56, v2\nv_sub_u32 v1, v1, v6\nv_and_b32 v6, 6, v2\nv_xor_b32 v1, v1, v6")
            A(f"v_mul_u32_u24 v2, s59, v2\nv_lshl_add_u32 v1, v1, 4, v2\nv_add_u32 v{vW[m]}, {(128 - 1024*m) & 0xffffffff}, v1")
        srd(48, 12, 4096 * 896 + 128, sub=128)
        A(f"s_lshl_b32 s58, s28, 9\ns_lshl_b32 s59, s31, 5\ns_add_u32 s58, s58, s59\ns_mul_i32 s65, s58, 896\ns_add_u32 s68, s65, {256*896}")
        srd(44, 8, 64 << 20); srd(52, 20, 0, sub=128); A("s_add_u32 s54, s100, s101\ns_mul_i32 s54, s54, 896\ns_add_u32 s54, s54, 128\ns_mul_i32 s69, s100, 896")
        if diag: srd(36, 26, WS_REC); A("s_mov_b64 s[72:73], s[70:71]"); stamps['l'].append('start')
    draining = [False]; issued = [0]; events = []; evn = [0]; EV = {}
    def after_load(Wn):
        issued[0] += 1
        if issued[0] >= Wn: A(f"s_waitcnt vmcnt({Wn-1})")
        flush_events(issued[0] - (Wn - 1))
    def flush_events(landed):
        while events and events[0][0] <= landed:
            _, val, name = events.pop(0)
            if name == 'V3' and vbar:
                assert draining[0]
                A("s_barrier")
            else: A(f"v_mov_b32 v5, {val}\nds_write_b32 v3, v5")
            if name in ('KW', 'V3', 'WD', 'WO1'): stamp('l', name)
    def add_event(name):
        evn[0] += 1; EV[name] = evn[0]; events.append((issued[0], evn[0], name))
    def force(name):
        for e in list(events):
            if e[2] == name:
                A(f"s_waitcnt vmcnt({issued[0] - e[0]})"); flush_events(e[0])
    def kvgroup(g, isk, Wn):
        regs, srdn = (vK, 40) if isk else (vV, 44)
        if g > 0 or not isk: A("s_add_u32 s66, s66, s63\ns_and_b32 s66, s66, 0xffff\ns_add_u32 s64, s61, s66")
        A(f"s_mov_b32 m0, {(KW_L if isk else V_L) + 4096*g}")
        for i in range(4):
            n = 4*g + i
            A(f"buffer_load_dwordx4 v{regs[n % len(regs)]}, s[{srdn}:{srdn+3}], s64 offen offset:{1024*i} {pol_kv} lds")
            after_load(Wn)
    def wgroup(sg, srdn, ldsbase, soff, Wn):
        P, hf = sg // 2, sg % 2
        A(f"s_mov_b32 m0, {ldsbase + 7168*P + 4096*hf}\ns_add_u32 s67, {soff}, {7168*P + 4096*hf}")
        for m in (range(4) if hf == 0 else range(4, 7)):
            A(f"buffer_load_dwordx4 v{vW[m]}, s[{srdn}:{srdn+3}], s67 offen offset:{1024*(m%4)} {pol_w} lds")
            after_load(Wn)
    WO0_L = V_L + 36864
    tgt = {'l': ('L_lstart', 's_cmp_eq_u32 s3, 4'), 'h': ('L_hstart', 's_cmp_eq_u32 s3, 5'), 'c': ('L_cstart', 's_cmp_lt_u32 s3, 4')}
    for ch in order[1:]: A(f"{tgt[ch][1]}\ns_cbranch_scc1 {tgt[ch][0]}")
    for ch in order: {'l': part_l, 'h': part_h, 'c': part_c}[ch]()
    A("; ---------------- loader\nL_loader:")
    if npre <= 1:
        for i in range(4, 8): A(f"v_xor_b32 v{vK[i]}, {(2*i) << 4}, v{vK[0]}")
    A("s_barrier")
    side = [('wo0', g) for g in range(8)] + [('wd', g) for g in range(8 - wdn if wdtail else 8)]
    def doside(Wi=Wi):
        kind, g = side.pop(0)
        if kind == 'wo0':
            wgroup(g, 48, WO0_L, 's65', Wi)
            if g == 7: add_event('WO0')
        else:
            if g == 0: spin('v4', FL_A, 4)
            wgroup(g, 52, W1_L, 's69', Wi)
    kf = max(kfirst, npre + 1)
    for g in range(npre, 16):
        Wc = Wk0 if (Wk0 and g < nk0w) else Wi
        kvgroup(g, True, Wc)
        if g == kf - 1: late_setup()
        if g == 9 and wdtail and wdn == 8: spin('v4', FL_A, 4)
        if g >= kf - 1 and side: doside(Wc)
    while side: doside()
    add_event('KW')
    for g in range(16):
        if g == 9: force('WO0'); spin('v4', FL_WO, 4)
        nin = 8 - nafter
        lo = (g - wo1g) * nin // (16 - wo1g) if g >= wo1g else 0
        hi = (g + 1 - wo1g) * nin // (16 - wo1g) if g >= wo1g else 0
        for sg in range(lo, hi):
            if sg == 0: force('KW'); spin('v4', FL_QK, 4)
            wgroup(sg, 48, KW_L, 's68', Wi)
            if sg == 7: add_event('WO1')
        kvgroup(g, False, Wi if (g >= wo1g and nin) else W)
        if g % 4 == 3: add_event(f'V{g//4}')
    if nafter == 8: force('KW'); spin('v4', FL_QK, 4)
    def wdt():
        for g in range(8 - wdn, 8): wgroup(g, 52, W1_L, 's69', Wl)
        add_event('WD')
    if wdtail == 'first': wdt()
    for g in range(8 - nafter, 8): wgroup(g, 48, KW_L, 's68', Wl)
    if nafter: add_event('WO1')
    if wdtail == 'last': wdt()
    draining[0] = True
    while events:
        A(f"s_waitcnt vmcnt({issued[0] - events[0][0]})")
        flush_events(events[0][0])
    dump_stamps('l')
    A("s_endpgm")

    A("; ---------------- compute")
    A("L_compute:")
    vM = 'v2'; vOne = 'v3'
    A(f"v_mov_b32 {vM}, {MISC}\nv_mov_b32 {vOne}, 1")
    A("v_and_b32 v4, 3, v0\nv_bfe_u32 v6, v0, 2, 2\nv_and_b32 v7, 15, v0")
    A("s_load_dword s32, s[26:27], 0")
    srd(36, 26, WS_REC)
    if diag: A("s_mov_b64 s[72:73], s[70:71]"); stamps['c'].append('start')
    A("s_cmp_lt_u32 s34, 32\ns_cbranch_scc0 L_norole")
    A("v_add_u32 v120, s62, v121\nv_cmp_gt_u32 s[52:53], 56, v0")
    A(f"v_lshrrev_b32 v12, 2, v0\nv_lshlrev_b32 v12, 7, v12\nv_lshl_add_u32 v12, v4, 3, v12\nv_bfe_u32 v1, v0, 3, 2\nv_xor_b32 v1, s3, v1\nv_lshl_add_u32 v124, v1, 5, v12\nv_add_u32 v124, {W1_L}, v124")
    A(f"v_add_u32 v120, {XN_L}, v120\ns_movk_i32 s56, 896\nv_mul_u32_u24 v123, s56, v4\nv_lshl_add_u32 v123, v5, 4, v123\ns_mul_i32 s56, s57, 448\ns_add_u32 s56, s56, {XN_L}\nv_add_u32 v123, s56, v123")
    A(f"s_lshl_b32 s56, s3, 6\ns_add_u32 s56, s56, {MISC + RED}\nv_lshl_add_u32 v125, v5, 4, s56\nv_lshl_add_u32 v125, v4, 8, v125")
    A("s_waitcnt vmcnt(7)")
    A("s_mov_b32 s56, 0xffff0000")
    for i in range(4): A(f"v_lshlrev_b32 v{24+2*i}, 16, v{8+i}\nv_and_b32 v{25+2*i}, s56, v{8+i}")
    A("v_pk_add_f32 v[32:33], v[24:25], v[26:27]\nv_pk_add_f32 v[34:35], v[28:29], v[30:31]\nv_pk_add_f32 v[32:33], v[32:33], v[34:35]\nv_add_f32 v32, v32, v33")
    allred('v_add_f32', 'v32', 'v33', (1, 2, 4, 8))
    A(f"v_mul_f32 v32, {hex(fbits(-1.0/448))}, v32")
    A("v_cndmask_b32 v34, 0, v32, s[52:53]\nv_mov_b32 v35, v34")
    for i in range(4): A(f"v_pk_add_f32 v[{40+2*i}:{41+2*i}], v[{24+2*i}:{25+2*i}], v[34:35]")
    A("v_pk_mul_f32 v[36:37], v[40:41], v[40:41]\nv_pk_mul_f32 v[38:39], v[42:43], v[42:43]")
    A("v_pk_fma_f32 v[36:37], v[44:45], v[44:45], v[36:37]\nv_pk_fma_f32 v[38:39], v[46:47], v[46:47], v[38:39]")
    A("v_pk_add_f32 v[36:37], v[36:37], v[38:39]\nv_add_f32 v36, v36, v37")
    allred('v_add_f32', 'v36', 'v37', (1, 2, 4, 8))
    A(f"v_mul_f32 v36, {hex(fbits(1.0/448))}, v36")
    A("v_cvt_pk_bf16_f32 v36, v36, v32")
    A("v_and_b32 v32, s56, v36\nv_lshlrev_b32 v36, 16, v36")
    A(f"v_add_f32 v36, {hex(fbits(1e-5))}, v36\nv_mov_b32 v33, v32\nv_cvt_pk_bf16_f32 v36, v36, v36\nv_and_b32 v36, s56, v36")
    A("v_sqrt_f32 v36, v36")
    for i in range(4): A(f"v_pk_add_f32 v[{24+2*i}:{25+2*i}], v[{24+2*i}:{25+2*i}], v[32:33]")
    A("v_cvt_pk_bf16_f32 v36, v36, v36\nv_and_b32 v36, s56, v36\nv_rcp_f32 v36, v36")
    for i in range(4): A(f"v_cvt_pk_bf16_f32 v{8+i}, v{24+2*i}, v{25+2*i}")
    A("v_mov_b32 v37, v36")
    for i in range(4): A(f"v_lshlrev_b32 v{24+2*i}, 16, v{8+i}\nv_and_b32 v{25+2*i}, s56, v{8+i}")
    for i in range(4): A(f"v_pk_mul_f32 v[{24+2*i}:{25+2*i}], v[{24+2*i}:{25+2*i}], v[36:37]")
    for i in range(4): A(f"v_cvt_pk_bf16_f32 v{8+i}, v{24+2*i}, v{25+2*i}")
    A("s_mov_b64 exec, s[52:53]\nds_write_b128 v120, v[8:11]\ns_waitcnt vmcnt(0) lgkmcnt(0)")
    signal(vM, FL_X, vOne)
    spin(vM, FL_X, 4, sleep=0)
    stamp('c', 'w1')
    for k in range(7):
        A(f"ds_read_b128 v[{8+4*k}:{11+4*k}], v123 offset:{64*k}")
        for a_ in range(2): A(f"ds_read_b64_tr_b16 v[{40+4*k+2*a_}:{41+4*k+2*a_}], v124 offset:{4096*k + 2048*a_}")
        if k >= 3:
            A("s_waitcnt lgkmcnt(9)")
            kk = k - 3
            A(f"v_mfma_f32_16x16x32_bf16 v[88:91], v[{40+4*kk}:{43+4*kk}], v[{8+4*kk}:{11+4*kk}], {'v[88:91]' if kk else '0'}")
    for kk in range(4, 7):
        A(f"s_waitcnt lgkmcnt({3*(6-kk)})")
        A(f"v_mfma_f32_16x16x32_bf16 v[88:91], v[{40+4*kk}:{43+4*kk}], v[{8+4*kk}:{11+4*kk}], v[88:91]")
    A("s_mov_b32 exec_lo, 0x000f000f\ns_mov_b32 exec_hi, 0x000f000f\nds_write_b128 v125, v[88:91]\ns_waitcnt lgkmcnt(0)")
    A("L_norole:\ns_waitcnt vmcnt(0)")
    signal(vM, FL_A, vOne)
    A("s_waitcnt lgkmcnt(0)")
    A(MKTAG)
    A("L_adone:")
    A(f"v_lshrrev_b32 v10, 2, v0\ns_movk_i32 s56, 896\nv_lshlrev_b32 v8, 3, v4\nv_mad_u32_u24 v8, v10, s56, v8")
    A(f"v_add_u32 v8, {WO1_L}, v8\nv_bfe_u32 v1, v0, 3, 2\ns_mul_i32 s56, s3, 7")
    for i in range(7):
        A(f"v_xor_b32 v9, s56, v1\nv_lshl_add_u32 v{200+i}, v9, 5, v8\nv_add_u32 v{184+i}, {WO0_L - WO1_L}, v{200+i}")
        if i < 6: A("s_add_u32 s56, s56, 1")
    A(TAGSEL); A(CHKSEL)
    A(f"s_lshl_b32 s56, s3, 14\ns_add_u32 s56, s56, {KW_L}\nv_lshl_add_u32 v8, v7, 9, s56\nv_xor_b32 v9, v5, v7")
    for m in range(4): A(f"v_xor_b32 v1, {4*m}, v9\nv_lshl_add_u32 v{208+m}, v1, 4, v8")
    A(f"v_and_b32 v11, 1, v0\nv_lshlrev_b32 v1, 9, v11\nv_lshl_add_u32 v212, v5, 4, v1\nv_add_u32 v212, {MISC + Q_M}, v212")
    A(f"s_lshl_b32 s56, s3, 9\ns_add_u32 s56, s56, {P_L}\nv_lshl_add_u32 v1, v11, 8, s56\nv_lshl_add_u32 v213, v5, 4, v1")
    A("v_lshl_add_u32 v1, v5, 6, s56\nv_bfe_u32 v8, v0, 1, 2\nv_lshl_add_u32 v1, v8, 4, v1\nv_bfe_u32 v12, v0, 3, 1\nv_lshl_add_u32 v1, v12, 3, v1\nv_lshl_add_u32 v218, v11, 2, v1")
    A(f"s_lshl_b32 s56, s3, 7\ns_add_u32 s56, s56, {MISC + SC}\nv_lshl_add_u32 v214, v0, 2, s56")
    A(f"v_lshlrev_b32 v215, 3, v0\nv_add_u32 v215, {MISC + SC}, v215")
    A(f"v_lshlrev_b32 v8, 9, v10\nv_lshl_add_u32 v8, v4, 3, v8\nv_and_b32 v9, 7, v10\ns_lshl_b32 s56, s3, 2")
    for t in range(4):
        A(f"v_xor_b32 v1, s56, v9\nv_lshl_add_u32 v{192+t}, v1, 5, v8")
        if t < 3: A("s_add_u32 s56, s56, 1")
    A("v_bfe_u32 v1, v0, 2, 1\nv_lshlrev_b32 v1, 8, v1\nv_lshl_add_u32 v1, v5, 6, v1\nv_lshl_add_u32 v219, v4, 4, v1\nv_bfe_u32 v8, v0, 1, 2")
    A(f"s_lshl_b32 s56, s30, 3\ns_add_u32 s56, s56, s28\ns_mul_i32 s56, s56, {8*OSTR}\ns_add_u32 s34, s56, {OBF}")
    A(f"s_mul_i32 s56, s31, {OSTR}\ns_add_u32 s35, s34, s56\ns_lshl_b32 s56, s3, 9\ns_add_u32 s48, s35, s56\ns_add_u32 s49, s48, {OBS - OBF}\ns_add_u32 s50, s35, {OBS - OBF}")
    A("v_cmp_eq_u32 s[8:9], 1, v8\nv_cmp_eq_u32 s[10:11], 2, v8\nv_cmp_eq_u32 s[12:13], 3, v8")
    A(f"v_lshrrev_b32 v1, 3, v0\ns_movk_i32 s56, {OSTR}\nv_mul_u32_u24 v1, s56, v1\nv_add_u32 v221, 2048, v1\nv_and_b32 v9, 7, v0\nv_lshl_add_u32 v1, v9, 4, v1\ns_lshl_b32 s56, s31, 8\nv_add_u32 v220, s56, v1")
    A(f"s_lshl_b32 s56, s3, 7\ns_add_u32 s56, s56, {OB_L}\nv_lshl_add_u32 v1, v11, 6, s56\nv_lshrrev_b32 v8, 5, v0\nv_lshl_add_u32 v1, v8, 5, v1\nv_bfe_u32 v8, v0, 2, 1\nv_lshl_add_u32 v1, v8, 4, v1")
    A("v_bfe_u32 v8, v0, 1, 1\nv_lshl_add_u32 v1, v8, 3, v1\nv_lshl_add_u32 v1, v12, 2, v1\nv_and_b32 v8, 1, v5\nv_lshl_add_u32 v222, v8, 1, v1\nv_cmp_eq_u32 s[14:15], 1, v11")
    A("v_lshl_add_u32 v223, v5, 4, s56")
    A("v_cmp_eq_u32 s[52:53], 1, v8\nv_cmp_eq_u32 s[54:55], 1, v12")
    A(f"s_lshl_b32 s56, s30, 6\ns_lshl_b32 s57, s28, 3\ns_add_u32 s56, s56, s57\ns_add_u32 s56, s56, s31\ns_lshl_b32 s56, s56, 11")
    A(f"s_lshl_b32 s57, s3, 9\ns_add_u32 s56, s56, s57\ns_add_u32 s33, s56, {PBUF}")
    A("v_lshlrev_b32 v1, 4, v7\nv_lshl_add_u32 v207, v5, 7, v1\nv_mov_b32 v199, s32")
    A("s_getreg_b32 s56, hwreg(HW_REG_XCC_ID)\ns_and_b32 s56, s56, 15\ns_add_u32 s56, s56, 1\ns_mul_i32 s56, s56, 0x9e3779b1\ns_xor_b32 s47, s32, s56\nv_mov_b32 v198, s47\nv_mov_b32 v197, 0x80\nv_lshlrev_b32 v124, 4, v0")
    A(f"s_mov_b32 s64, 0xffff0000\ns_mov_b32 s65, {hex(fbits(1.4426950408889634/16))}\ns_mov_b32 s51, 0xffffff00")
    spin(vM, PROG, EV['WO0'], sleep=1)
    def pull(h):
        for i in range(7):
            for a_ in range(2):
                r = WOR + 28*h + 4*i + 2*a_
                A(f"ds_read_b64_tr_b16 v[{r}:{r+1}], v{(184 if h == 0 else 200)+i} offset:{14336*a_}")
    pull(0)
    A("s_waitcnt lgkmcnt(0)")
    signal(vM, FL_WO, vOne)
    if prestore == 1:
        A("v_not_b32 v8, v198\nv_not_b32 v9, v198\nv_not_b32 v10, v198\nv_not_b32 v11, v198\nv_lshlrev_b32 v12, 4, v0")
        A("s_mov_b32 exec_hi, 0\nbuffer_store_dwordx4 v[8:11], v12, s[36:39], s48 offen\ns_mov_b64 exec, -1")
    spin(vM, FL_Q, 1)
    stamp('c', 'q')
    for k in range(8): A(f"ds_read_b128 v[{8+4*k}:{11+4*k}], v212 offset:{64*k}")
    spin(vM, PROG, EV['KW'], sleep=0)
    for k in range(8):
        for t in range(2):
            r = 40 + 8*k + 4*t
            A(f"ds_read_b128 v[{r}:{r+3}], v{208 + (k&3)} offset:{t*8192 + (k>>2)*256}")
    for k in range(8):
        A(f"s_waitcnt lgkmcnt({14 - 2*k})")
        for t in range(2):
            r = 40 + 8*k + 4*t; d = 104 + 4*t
            c = f"v[{d}:{d+3}]" if k else "0"
            A(f"v_mfma_f32_16x16x32_bf16 v[{d}:{d+3}], v[{8+4*k}:{11+4*k}], v[{r}:{r+3}], {c}")
    A("v_cndmask_b32 v8, v104, v108, s[52:53]\nv_cndmask_b32 v9, v105, v109, s[52:53]\nv_cvt_pk_bf16_f32 v8, v8, v9")
    A("s_mov_b32 exec_hi, 0\nds_write_b32 v214, v8\ns_waitcnt lgkmcnt(0)")
    signal(vM, FL_QK, vOne)
    spin(vM, FL_QK, 4, sleep=0)
    A("ds_read_b64 v[8:9], v215\ns_waitcnt lgkmcnt(0)")
    A("v_lshlrev_b32 v16, 16, v8\nv_lshlrev_b32 v17, 16, v9\nv_and_b32 v18, s64, v8\nv_and_b32 v19, s64, v9")
    A("v_max_f32 v24, v16, v17\nv_max_f32 v25, v18, v19")
    A("v_permlane32_swap_b32 v24, v25\nv_max_f32 v24, v24, v25")
    A("v_mov_b32 v25, v24\nv_permlane16_swap_b32 v24, v25\nv_max_f32 v24, v24, v25")
    for r in (1, 2, 4, 8): A(f"v_max_f32_dpp v24, v24, v24 row_ror:{r} row_mask:0xf bank_mask:0xf")
    A("v_mul_f32 v24, s65, v24\nv_and_b32 v24, s51, v24")
    A("v_readlane_b32 s56, v24, 0\nv_readlane_b32 s57, v24, 32\nv_mov_b32 v25, s65")
    A("v_fma_f32 v16, v16, v25, -s56\nv_fma_f32 v17, v17, v25, -s56\nv_fma_f32 v18, v18, v25, -s57\nv_fma_f32 v19, v19, v25, -s57")
    for i in range(4): A(f"v_exp_f32 v{16+i}, v{16+i}")
    A("v_cvt_pk_bf16_f32 v8, v16, v17\nv_cvt_pk_bf16_f32 v9, v18, v19")
    A("ds_write2st64_b32 v218, v8, v9 offset0:0 offset1:1")
    A("v_add_f32 v26, v16, v17\nv_add_f32 v27, v18, v19")
    A("v_permlane32_swap_b32 v26, v27\nv_add_f32 v26, v26, v27\ns_waitcnt lgkmcnt(0)")
    for k in range(4): A(f"ds_read_b128 v[{8+4*k}:{11+4*k}], v213 offset:{64*k}")
    A("v_mov_b32 v27, v26\nv_permlane16_swap_b32 v26, v27\nv_add_f32 v26, v26, v27")
    for r in (1, 2, 4, 8): A(f"v_add_f32_dpp v26, v26, v26 row_ror:{r} row_mask:0xf bank_mask:0xf")
    A("s_cmp_lg_u32 s3, 0\ns_cbranch_scc1 L_noml")
    A("v_readlane_b32 s58, v26, 32\nv_mov_b32 v28, s56\nv_mov_b32 v29, v26\nv_mov_b32 v30, s57\nv_mov_b32 v31, s58")
    for r in range(4): A(f"v_perm_b32 v{32+r}, v{28+r}, v198, {TS[r]}")
    for r in range(4): A(f"v_perm_b32 v{120+r}, v{28+r}, v199, {TS[r]}")
    A("s_mov_b64 exec, 0xff\nbuffer_store_dwordx4 v[32:35], v124, s[36:39], s35 offen offset:2048")
    A("s_mov_b64 exec, -1\nL_noml:")
    if prestore == 2:
        A("buffer_load_dword v127, v220, s[36:39], s34 offen sc1\nbuffer_load_dword v127, v220, s[36:39], s34 offen offset:128 sc1")
    stamp('c', 'p')
    for i in range(56): A(f"v_mov_b32 v{MO+i}, 0")
    for k in range(4):
        if k == 3 and vbar: A("s_barrier")
        else: spin(vM, PROG, EV[f'V{k}'], sleep=0)
        if k == 3: stamp('c', 'V')
        if k == mlat: A("buffer_load_dwordx4 v[96:99], v221, s[36:39], s34 offen sc1")
        for t in range(4):
            for a in range(2):
                r = 224 + 16*(k&1) + 4*t + 2*a
                A(f"ds_read_b64_tr_b16 v[{r}:{r+1}], v{192+t} offset:{k*16384 + a*8192}")
        for t in range(4):
            A(f"s_waitcnt lgkmcnt({6 - 2*t})")
            r = 224 + 16*(k&1) + 4*t; d = 104 + 4*t
            c = f"v[{d}:{d+3}]" if k else "0"
            A(f"v_mfma_f32_16x16x32_bf16 v[{d}:{d+3}], v[{r}:{r+3}], v[{8+4*k}:{11+4*k}], {c}")
    for t in range(1, 4):
        for r in range(4): A(f"v_cndmask_b32 v{104+r}, v{104+r}, v{104+4*t+r}, s[{6+2*t}:{7+2*t}]")
    for r in range(4): A(f"v_perm_b32 v{104+r}, v{104+r}, v198, {TS[r]}")
    A("s_mov_b32 exec_lo, 0x00ff00ff\ns_mov_b32 exec_hi, 0x00ff00ff")
    A("buffer_store_dwordx4 v[104:107], v219, s[36:39], s48 offen")
    A("s_mov_b64 exec, -1")
    stamp('c', 'opub')
    def fail(back, remask=False):
        sk = lab('sw')
        A(f"s_add_u32 s60, s60, 1\ns_cmp_eq_u32 s60, {nfast}\ns_cbranch_scc0 {sk}")
        A(f"s_add_u32 s61, s34, {OBS - OBF}\ns_mov_b32 s46, s32")
        for r in range(4): A(f"v_perm_b32 v{104+r}, v{104+r}, v199, {TS[r]}")
        A("s_mov_b32 exec_lo, 0x00ff00ff\ns_mov_b32 exec_hi, 0x00ff00ff\nbuffer_store_dwordx4 v[104:107], v219, s[36:39], s49 offen sc1\ns_mov_b64 exec, -1")
        A(f"s_cmp_lg_u32 s3, 0\ns_cbranch_scc1 {sk}\ns_mov_b64 exec, 0xff\nbuffer_store_dwordx4 v[120:123], v124, s[36:39], s50 offen offset:2048 sc1\ns_mov_b64 exec, -1")
        A(f"{sk}:")
    def tchk(r, dst, t0, t1):
        A(f"v_perm_b32 {t0}, v{r+1}, v{r}, s66\nv_perm_b32 {t1}, v{r+3}, v{r+2}, s67\nv_or_b32 {t0}, {t0}, {t1}\nv_cmp_ne_u32 {dst}, s46, {t0}")
    def oiss(r): A(f"buffer_load_dwordx4 v[{r}:{r+3}], v220, s[36:39], s61 offen sc1\nbuffer_load_dwordx4 v[{r+4}:{r+7}], v220, s[36:39], s61 offen offset:128 sc1")
    A("s_mov_b32 s60, 0\ns_mov_b32 s61, s34\ns_mov_b32 s46, s47")
    oiss(8)
    lm = lab('ml'); lmd = lab('mld')
    A(f"s_waitcnt vmcnt(3)\n{lm}:")
    tchk(96, 'vcc', 'v24', 'v25')
    if fake: A("s_mov_b64 vcc, 0")
    A(f"s_cmp_eq_u64 vcc, 0\ns_cbranch_scc1 {lmd}")
    fail(lm)
    A(f"buffer_load_dwordx4 v[96:99], v221, s[36:39], s61 offen sc1\ns_waitcnt vmcnt(0)\ns_cmp_lt_u32 s60, {LIMIT}\ns_cbranch_scc1 {lm}\n{lmd}:")
    stamp('c', 'mlok')
    if diag and (keep is None or 'nml' in keep):
        k = len(stamps['c']); stamps['c'].append('nml'); A(f"s_mov_b32 s{72+2*k}, s60\ns_mov_b32 s{73+2*k}, 0")
    A("v_and_b32 v96, s51, v96\nv_and_b32 v98, s51, v98\nv_perm_b32 v97, v97, v197, s62\nv_perm_b32 v99, v99, v197, s62\nv_mov_b32 v24, v96\nv_mov_b32 v25, v98")
    A("v_permlane32_swap_b32 v24, v25\nv_max_f32 v24, v24, v25\nv_mov_b32 v25, v24\nv_permlane16_swap_b32 v24, v25\nv_max_f32 v24, v24, v25")
    A("v_max_f32_dpp v24, v24, v24 row_ror:8 row_mask:0xf bank_mask:0xf\nv_mov_b32 v25, v24\nv_permlane32_swap_b32 v24, v25")
    A("v_sub_f32 v96, v96, v24\nv_sub_f32 v98, v98, v25\nv_exp_f32 v100, v96\nv_exp_f32 v102, v98")
    A("v_mul_f32 v24, v97, v100\nv_mul_f32 v25, v99, v102")
    A("v_permlane32_swap_b32 v24, v25\nv_add_f32 v24, v24, v25\nv_mov_b32 v25, v24\nv_permlane16_swap_b32 v24, v25\nv_add_f32 v24, v24, v25")
    A("v_add_f32_dpp v24, v24, v24 row_ror:8 row_mask:0xf bank_mask:0xf\nv_rcp_f32 v24, v24\nv_mov_b32 v25, v24\nv_permlane32_swap_b32 v24, v25")
    A("v_cndmask_b32 v100, v100, v102, s[14:15]\nv_cndmask_b32 v24, v24, v25, s[14:15]\nv_mul_f32 v100, v100, v24\nv_mov_b32 v101, v100")
    lo = lab('op'); od = lab('od')
    stamp('c', 'scale')
    if diag and keep and 'poll1' in keep:
        A("s_waitcnt vmcnt(0)"); stamp('c', 'poll1')
    if pipe: oiss(8)
    A(f"{lo}:\ns_waitcnt vmcnt({2 if pipe else 0})")
    tchk(8, 's[6:7]', 'v24', 'v25'); tchk(12, 'vcc', 'v26', 'v27')
    A("s_or_b64 vcc, vcc, s[6:7]")
    if fake: A("s_mov_b64 vcc, 0")
    A(f"s_cbranch_vccz {od}\ns_mov_b64 s[8:9], vcc\ns_mov_b64 exec, -1")
    fail(lo, True)
    if osleep: A(f"s_sleep {osleep}")
    A("s_mov_b64 exec, s[8:9]")
    oiss(8)
    A(f"s_cmp_lt_u32 s60, {LIMIT}\ns_cbranch_scc1 {lo}\ns_waitcnt vmcnt(0)")
    A(f"{od}:\ns_mov_b64 exec, -1\nds_read_b32 v1, {vM} offset:{PROG}")
    if mask:
        for n in (0, 1, 4, 5, 2, 3, 6, 7): A(f"v_perm_b32 v{24+n}, v{8+n}, v197, {TS[0]}")
    A("v_pk_mul_f32 v[24:25], v[24:25], v[100:101]\nv_pk_mul_f32 v[28:29], v[28:29], v[100:101]\nv_pk_mul_f32 v[26:27], v[26:27], v[100:101]\nv_pk_mul_f32 v[30:31], v[30:31], v[100:101]")
    stamp('c', 'ogat')
    for r in range(4): A(f"v_permlane32_swap_b32 v{24+r}, v{28+r}")
    A("v_pk_add_f32 v[24:25], v[24:25], v[28:29]\nv_pk_add_f32 v[26:27], v[26:27], v[30:31]")
    A("v_permlane16_swap_b32 v24, v25\nv_permlane16_swap_b32 v26, v27\nv_add_f32 v24, v24, v25\nv_add_f32 v26, v26, v27")
    for x in (24, 26): A(f"v_add_f32_dpp v{x}, v{x}, v{x} row_ror:8 row_mask:0xf bank_mask:0xf")
    A("v_cndmask_b32 v24, v24, v26, s[54:55]\nv_cvt_pk_bf16_f32 v24, v24, v24")
    A("ds_write_b16 v222, v24\ns_waitcnt lgkmcnt(0)\nv_readfirstlane_b32 s56, v1")
    for i in range(7):
        m = 0x00010001 << i
        A(f"s_mov_b32 exec_lo, {hex(m)}\ns_mov_b32 exec_hi, {hex(m)}")
        A(f"ds_read_b128 v[{MO+8*i}:{MO+3+8*i}], v223\nds_read_b128 v[{MO+4+8*i}:{MO+7+8*i}], v223 offset:64")
    lw = lab('w1ok')
    A(f"s_mov_b64 exec, -1\ns_cmp_ge_u32 s56, {EV['WO1']}\ns_cbranch_scc1 {lw}")
    spin(vM, PROG, EV['WO1'], sleep=0)
    A(f"{lw}:")
    stamp('c', 'o')
    if diag and (keep is None or 'npoll' in keep):
        k = len(stamps['c']); stamps['c'].append('npoll'); A(f"s_mov_b32 s{72+2*k}, s60\ns_mov_b32 s{73+2*k}, 0")
    for h in range(2):
        for i in range(7):
            A(f"s_waitcnt lgkmcnt({12 - 2*i*h})")
            r = WOR + 28*h + 4*i
            c = "v[108:111]" if (h or i) else "0"
            A(f"v_mfma_f32_16x16x32_bf16 v[108:111], v[{r}:{r+3}], v[{MO+8*i+4*h}:{MO+3+8*i+4*h}], {c}")
            if h == 0:
                for a_ in range(2):
                    r = WOR + 28 + 4*i + 2*a_
                    A(f"ds_read_b64_tr_b16 v[{r}:{r+1}], v{200+i} offset:{14336*a_}")
    A("s_mov_b32 exec_lo, 0x00ff00ff\ns_mov_b32 exec_hi, 0x00ff00ff")
    for r in range(4): A(f"v_perm_b32 v{108+r}, v{108+r}, v199, {TS[r]}")
    A("buffer_store_dwordx4 v[108:111], v207, s[36:39], s33 offen sc1")
    signal(vM, FL_PUB, vOne)
    stamp('c', 'pub')
    dump_stamps('c')
    A("s_cmp_eq_u32 s2, 255\ns_cbranch_scc0 L_end\ns_cmp_eq_u32 s3, 0\ns_cbranch_scc1 L_epoch\ns_endpgm")

    A("; ---------------- helper")
    A("L_helper:")
    A(f"v_mov_b32 {vM}, {MISC}\nv_mov_b32 {vOne}, 1")
    A("s_load_dword s32, s[26:27], 0"); A(FDEC); A(FDEC2)
    srd(36, 26, WS_REC); srd(40, 4, 3584); srd(44, 22, 3584)
    if diag: A("s_mov_b64 s[72:73], s[70:71]"); stamps['h'].append('start')
    A(f"s_mul_i32 s56, s30, 30720\ns_add_u32 s56, s56, {PJF}\ns_lshl_b32 s57, s28, 11\ns_add_u32 s34, s56, s57")
    A(f"s_lshl_b32 s57, s100, 2\ns_add_u32 s56, s56, s57\ns_add_u32 s48, s56, {4096*4}")
    A(f"v_lshlrev_b32 v5, 4, v0\nv_add_u32 v56, {PJH}, v5\nv_lshlrev_b32 v6, 3, v0\nv_add_u32 v7, {MISC + Q_M}, v6")
    A(f"s_lshr_b32 s56, s101, 2\nv_cmp_gt_u32 s[54:55], s56, v0\nv_mov_b32 v46, 0x7ff00000\nv_cndmask_b32 v46, v46, v5, s[54:55]\nv_add_u32 v47, {1792*4}, v46\nv_add_u32 v57, {PJH}, v46\nv_add_u32 v58, {PJH}, v47")
    A(f"v_and_b32 v9, 3, v0\nv_lshlrev_b32 v9, 4, v9\nv_bfe_u32 v10, v0, 2, 1\nv_lshl_add_u32 v9, v10, 3, v9\nv_add_u32 v48, {MISC + HB}, v9\nv_and_b32 v1, 1, v0")
    A(f"v_lshrrev_b32 v11, 4, v0\nv_lshlrev_b32 v49, 4, v11\nv_add_u32 v49, {MISC + HB}, v49")
    A(f"v_lshrrev_b32 v10, 2, v0\ns_movk_i32 s56, 896\nv_and_b32 v9, 3, v0\nv_lshlrev_b32 v9, 3, v9\nv_mad_u32_u24 v9, v10, s56, v9\nv_add_u32 v9, {W1_L}, v9\nv_bfe_u32 v10, v0, 3, 2")
    for m in range(4): A(f"v_xor_b32 v12, {m}, v10\nv_lshl_add_u32 v{50+m}, v12, 5, v9")
    A("v_and_b32 v9, 7, v0\nv_lshlrev_b32 v9, 4, v9\nv_lshl_add_u32 v9, v11, 7, v9\nv_bfe_u32 v10, v0, 3, 1\nv_lshl_add_u32 v54, v10, 9, v9")
    A(f"s_lshl_b32 s56, s30, 6\ns_lshl_b32 s57, s28, 3\ns_add_u32 s56, s56, s57\ns_add_u32 s56, s56, s31\ns_lshl_b32 s56, s56, 11\ns_add_u32 s49, s56, {YBUF}")
    for i in range(56): A(f"v_mov_b32 v{128+i}, 0")
    A("s_lshr_b32 s35, s28, 1\ns_and_b32 s56, s28, 1\ns_lshl_b32 s56, s56, 3\ns_add_u32 s33, s56, s31")
    A("v_lshrrev_b32 v10, 1, v0\nv_lshlrev_b32 v9, 4, v1\nv_lshl_add_u32 v41, v10, 11, v9")
    A("v_bfe_u32 v10, v0, 4, 1\nv_lshrrev_b32 v11, 5, v0\nv_lshl_add_u32 v10, v10, 1, v11\nv_lshl_add_u32 v10, v1, 4, v10")
    A("s_lshr_b32 s56, s33, 2\ns_mul_i32 s56, s56, 112\ns_and_b32 s57, s33, 3\ns_lshl_b32 s57, s57, 2\ns_add_u32 s56, s56, s57\ns_lshl_b32 s57, s30, 5\ns_add_u32 s56, s56, s57")
    A("s_mul_i32 s57, s35, 448\ns_add_u32 s56, s56, s57\ns_lshl_b32 s56, s56, 1\nv_lshl_add_u32 v43, v10, 1, s56")
    A("s_cmp_eq_u32 s30, 3\ns_cselect_b32 s18, 0, 0x00020002\ns_or_b32 s18, s18, 0x00010001")
    A(f"s_lshl_b32 s57, s33, 7\ns_lshl_b32 s56, s30, 5\ns_add_u32 s57, s57, s56\ns_lshl_b32 s56, s35, 17\ns_add_u32 s56, s56, s57\ns_add_u32 s14, s56, {PBUF}\ns_add_u32 s15, s14, {32*PSTR}\ns_add_u32 s16, s56, {YBUF}\ns_add_u32 s17, s16, {32*PSTR}")
    A(CHKSEL); A(TAGSEL); A("s_mov_b32 s64, 0xffff0000\nv_mov_b32 v42, 0x80")
    A("s_waitcnt lgkmcnt(0)")
    A(MKTAG); A("v_mov_b32 v55, s32")
    A("s_lshr_b32 s56, s99, 6\ns_add_u32 s56, s56, s31\ns_sub_u32 s56, s56, 4\ns_bitcmp0_b32 s29, 1\ns_cselect_b32 s57, 64, 92\ns_add_u32 s56, s56, s57")
    A("s_lshl_b32 s57, s28, 3\ns_lshr_b32 s58, s29, 1\ns_add_u32 s57, s57, s58\ns_cmp_lt_u32 s29, 16\ns_cselect_b32 s56, s57, s56\ns_lshl_b32 s56, s56, 8")
    A(f"s_and_b32 s57, s29, 1\ns_mul_i32 s57, s57, {PJH}\ns_add_u32 s56, s56, s57\ns_add_u32 s50, s56, {PJF}\ns_add_u32 s51, s56, {PJS}")
    A(f"v_lshrrev_b32 v8, 4, v0\ns_movk_i32 s57, 30720\nv_and_b32 v9, 15, v0\nv_lshlrev_b32 v9, 4, v9\nv_mad_u32_u24 v59, v8, s57, v9\nv_add_u32 v60, {MISC + RED}, v5")
    A("v_mov_b32 v196, 0x7ff00000")
    spin(vM, FL_A, 4, sleep=0)
    A("s_and_b32 s56, s28, 4\ns_add_u32 s56, s56, s29\ns_cmp_lt_u32 s56, 32\ns_cbranch_scc0 L_nopj")
    A("ds_read_b128 v[192:195], v60\ns_waitcnt lgkmcnt(0)")
    for r in range(4): A(f"v_perm_b32 v{192+r}, v{192+r}, v55, {TS[r]}")
    A("buffer_store_dwordx4 v[192:195], v59, s[36:39], s50 offen\nv_mov_b32 v196, v59")
    A("L_nopj:")
    def slowpj():
        if slowcopy: A("s_mov_b64 exec, -1\nbuffer_store_dwordx4 v[192:195], v196, s[36:39], s51 offen sc1")
    if slowat == 'now': slowpj()
    stamp('h', 'pj')
    A("s_sub_u32 s48, s48, s34\nv_add_u32 v46, s48, v46\nv_add_u32 v47, s48, v47\nv_add_u32 v57, s48, v57\nv_add_u32 v58, s48, v58")
    def iss(so):
        A(f"buffer_load_dwordx4 v[8:11], v5, s[36:39], {so} offen sc1\nbuffer_load_dwordx4 v[12:15], v5, s[36:39], {so} offen offset:1024 sc1")
        A(f"buffer_load_dwordx4 v[16:19], v56, s[36:39], {so} offen sc1\nbuffer_load_dwordx4 v[20:23], v56, s[36:39], {so} offen offset:1024 sc1")
        for n, va in enumerate(('v46', 'v47', 'v57', 'v58')): A(f"buffer_load_dwordx4 v[{24+4*n}:{27+4*n}], {va}, s[36:39], {so} offen sc1")
    def chk4(b=8):
        for n in range(4): tagcheck(b+4*n, f"s[{6+2*n}:{7+2*n}]")
        A("s_or_b64 s[6:7], s[6:7], s[8:9]\ns_or_b64 s[10:11], s[10:11], s[12:13]\ns_or_b64 s[6:7], s[6:7], s[10:11]")
    def chk8():
        chk4(24); A("s_and_b64 s[52:53], s[6:7], s[54:55]"); chk4(8); A("s_or_b64 s[6:7], s[6:7], s[52:53]")
        if 'Q' in exp: A("s_mov_b64 s[6:7], 0")
    if qdelay: A(f's_sleep {qdelay}')
    fspoll(iss, chk8, 's34', PJS - PJF, qsleep, slowpj)
    if mask:
        for n in range(32): A(f"v_perm_b32 v{8+n}, v{8+n}, v42, {TS[0]}")
    for n in range(4): A(f"v_pk_add_f32 v[{8+2*n}:{9+2*n}], v[{8+2*n}:{9+2*n}], v[{16+2*n}:{17+2*n}]")
    for n in range(4): A(f"v_cvt_pk_bf16_f32 v{16+n}, v{8+2*n}, v{9+2*n}")
    A("ds_write_b64 v7, v[16:17]\nds_write_b64 v7, v[18:19] offset:512\ns_waitcnt lgkmcnt(0)")
    signal(vM, FL_Q, vOne)
    stamp('h', 'q')
    A("buffer_load_ushort v44, v43, s[40:43], 0 offen")
    def dotouch():
        for so in ('s14', 's15', 's16', 's17')[:touch]: A(f"buffer_load_dword v40, v41, s[36:39], {so} offen")
    if touchat == 'q': dotouch()
    for n in range(4): A(f"v_pk_add_f32 v[{8+2*n}:{9+2*n}], v[{24+2*n}:{25+2*n}], v[{32+2*n}:{33+2*n}]")
    for n in range(4): A(f"v_cvt_pk_bf16_f32 v{16+n}, v{8+2*n}, v{9+2*n}")
    for n in range(4): A(f"v_lshlrev_b32 v{8+2*n}, 16, v{16+n}\nv_and_b32 v{9+2*n}, s64, v{16+n}")
    for e in range(4): A(f"v_cmp_lt_f32 s[{6+2*e}:{7+2*e}], 0, v{8+e}")
    for e in range(4): A(f"v_cndmask_b32 v{16+e}, 0, 1.0, s[{6+2*e}:{7+2*e}]")
    A("v_pk_mul_f32 v[8:9], v[8:9], v[16:17]\nv_pk_mul_f32 v[10:11], v[10:11], v[18:19]\nv_pk_mul_f32 v[8:9], v[8:9], v[12:13]\nv_pk_mul_f32 v[10:11], v[10:11], v[14:15]")
    A("v_cvt_pk_bf16_f32 v12, v8, v9\nv_cvt_pk_bf16_f32 v13, v10, v11")
    A("s_mov_b64 exec, 0xff\nds_write_b64 v48, v[12:13]\ns_waitcnt lgkmcnt(0)")
    for i in range(14):
        m = 0x00010001 << (i + i // 7)
        A(f"s_mov_b32 exec_lo, {hex(m)}\ns_mov_b32 exec_hi, {hex(m)}\nds_read_b128 v[{128+4*i}:{131+4*i}], v49")
    A("s_mov_b64 exec, -1")
    stamp('h', 'h')
    spin(vM, PROG, EV['WD' if wdtail else 'KW'], sleep=1)
    def wdread(tau):
        r = 64 + 4 * (tau % 14)
        for a in range(2): A(f"ds_read_b64_tr_b16 v[{r+2*a}:{r+2*a+1}], v{50 + (tau&3)} offset:{(tau>>2)*128 + a*14336}")
    def wdmma(tau):
        r = 64 + 4 * (tau % 14); d = 56 + 4 * (tau // 14)
        c = f"v[{d}:{d+3}]" if tau % 14 else "0"
        A(f"v_mfma_f32_16x16x32_bf16 v[{d}:{d+3}], v[{r}:{r+3}], v[{128+4*(tau%14)}:{131+4*(tau%14)}], {c}")
    PD = 6
    for tau in range(28 + PD):
        if tau < 28: wdread(tau)
        if tau >= PD:
            A(f"s_waitcnt lgkmcnt({2*min(PD, 27 - (tau - PD))})")
            wdmma(tau - PD)
    for r in range(8): A(f"v_perm_b32 v{56+r}, v{56+r}, v55, {TS[r%4]}")
    if touchat not in ('q', ypubat): spin(vM, PROG, EV[touchat], sleep=2); dotouch()
    if vbar:
        assert ypubat == 'V3' and slowat == 'V3'
        A("s_barrier")
    elif ypubat: spin(vM, PROG, EV[ypubat], sleep=2)
    if touchat == ypubat: dotouch()
    if 'Y' not in exp: A("buffer_store_dwordx4 v[56:59], v54, s[36:39], s49 offen sc1\nbuffer_store_dwordx4 v[60:63], v54, s[36:39], s49 offen offset:1024 sc1")
    if skipslow:
        lk = lab('sk'); lkd = lab('skd')
        A("s_getreg_b32 s56, hwreg(HW_REG_XCC_ID)\ns_and_b32 s56, s56, 15\ns_add_u32 s56, s56, 1\ns_mul_i32 s56, s56, 0x9e3779b1\ns_xor_b32 s53, s32, s56")
        A(f"v_lshrrev_b32 v8, 3, v0\nv_and_b32 v9, 7, v0\nv_lshl_add_u32 v8, v8, 6, v9\ns_movk_i32 s56, {OSTR}\nv_mul_u32_u24 v8, s56, v8")
        A(f"s_mul_i32 s57, s28, {8*OSTR}\ns_add_u32 s57, s57, {OBF + 2048}\ns_mov_b32 s60, {skipslow}\ns_mov_b32 exec_hi, 0\n{lk}:")
        A("buffer_load_dwordx4 v[12:15], v8, s[36:39], s57 offen sc1\ns_waitcnt vmcnt(0)")
        A("v_perm_b32 v1, v13, v12, s66\nv_perm_b32 v4, v15, v14, s67\nv_or_b32 v1, v1, v4\nv_cmp_ne_u32 vcc, s53, v1")
        A(f"s_cbranch_vccz {lkd}\ns_mov_b64 exec, vcc\ns_sleep {sksleep}\ns_sub_u32 s60, s60, 1\ns_cbranch_scc0 {lk}")
        slowpj()
        A(f"{lkd}:\ns_mov_b64 exec, -1")
    elif slowat == ypubat: slowpj()
    elif slowat in EV: spin(vM, PROG, EV[slowat], sleep=2); slowpj()
    stamp('h', 'ypub')
    def reduce4(r):
        A(f"v_permlane32_swap_b32 v{r}, v{r+1}\nv_permlane32_swap_b32 v{r+2}, v{r+3}")
        A(f"v_add_f32 v{r}, v{r}, v{r+1}\nv_add_f32 v{r+2}, v{r+2}, v{r+3}")
        A(f"v_permlane16_swap_b32 v{r}, v{r+2}\nv_add_f32 v{r}, v{r}, v{r+2}")
        for x in (2, 4, 8): A(f"v_add_f32_dpp v{r}, v{r}, v{r} row_ror:{x} row_mask:0xf bank_mask:0xf")
    def simple_poll(issue, check, sleep):
        l = lab('sp'); d = lab('spd')
        A(f"s_mov_b32 s60, {LIMIT}\n{l}:")
        issue(); A("s_waitcnt vmcnt(0)"); check()
        if fake: A("s_mov_b64 s[6:7], 0")
        A(f"s_cmp_eq_u64 s[6:7], 0\ns_cbranch_scc1 {d}")
        if sleep: A(f"s_sleep {sleep}")
        A(f"s_sub_u32 s60, s60, 1\ns_cbranch_scc0 {l}\n{d}:")
    def ld2(r, sa, sb): A(f"buffer_load_dwordx4 v[{r}:{r+3}], v41, s[36:39], {sa} offen sc1\nbuffer_load_dwordx4 v[{r+4}:{r+7}], v41, s[36:39], {sb} offen sc1")
    def ck2(r):
        tagcheck(r, 's[6:7]'); tagcheck(r+4, 'vcc'); A("s_or_b64 vcc, vcc, s[6:7]")
        if fake: A("s_mov_b64 vcc, 0")
    ly = lab('fy'); lys = lab('fys'); ls = lab('fs'); fd = lab('fd')
    spin(vM, FL_PUB, 4, sleep=0)
    A(f"s_mov_b32 s60, {LIMIT}")
    ld2(8, 's14', 's15')
    if 'Y' in exp: A(f"s_waitcnt vmcnt(0)\ns_branch {lys}")
    A(f"{ly}:")
    ld2(16, 's16', 's17'); A("s_waitcnt vmcnt(0)"); ck2(16)
    A(f"s_cbranch_vccz {lys}\ns_mov_b64 exec, vcc\ns_sub_u32 s60, s60, 1\ns_cbranch_scc0 {ly}\n{lys}:\ns_mov_b64 exec, -1")
    tagcheck(8, 's[6:7]'); tagcheck(12, 's[8:9]')
    l0 = lab('f0')
    A(f"s_or_b64 vcc, s[8:9], s[6:7]\ns_cbranch_vccz {l0}\ns_mov_b64 exec, vcc")
    ld2(8, 's14', 's15')
    A(f"s_mov_b64 exec, -1\n{l0}:")
    if mask:
        for n in range(8): A(f"v_perm_b32 v{16+n}, v{16+n}, v42, {TS[0]}")
    A("v_pk_add_f32 v[16:17], v[16:17], v[20:21]\nv_pk_add_f32 v[18:19], v[18:19], v[22:23]")
    reduce4(16)
    A("v_cvt_pk_bf16_f32 v16, v16, v16\nv_and_b32 v16, s64, v16")
    A(f"v_mul_f32 v17, {hex(fbits(-1.4426950408889634))}, v16\nv_exp_f32 v17, v17\nv_add_f32 v17, 1.0, v17\nv_rcp_f32 v17, v17\nv_mul_f32 v16, v16, v17")
    A("v_cvt_pk_bf16_f32 v16, v16, v16\nv_and_b32 v45, s64, v16\nv_lshlrev_b32 v44, 16, v44")
    stamp('h', 'y')
    if pipe:
        A("s_waitcnt vmcnt(0)"); tagcheck(8, 's[6:7]'); tagcheck(12, 's[8:9]')
        A(f"s_or_b64 vcc, s[8:9], s[6:7]\ns_cbranch_vccz {fd}\ns_mov_b64 exec, vcc")
        ld2(8, 's14', 's15')
        if pgap: A(f"s_sleep {pgap}")
        ld2(8, 's14', 's15')
    A(f"{ls}:\ns_waitcnt vmcnt({2 if pipe else 0})")
    tagcheck(8, 's[6:7]'); tagcheck(12, 's[8:9]')
    A("s_or_b64 vcc, s[8:9], s[6:7]")
    if fake: A("s_mov_b64 vcc, 0")
    A(f"s_cbranch_vccz {fd}")
    if fsleep: A(f"s_sleep {fsleep}")
    A("s_mov_b64 exec, vcc")
    ld2(8, 's14', 's15')
    A(f"s_sub_u32 s60, s60, 1\ns_cbranch_scc0 {ls}\ns_waitcnt vmcnt(0)")
    A(f"{fd}:\ns_mov_b64 exec, -1")
    if mask:
        for n in range(8): A(f"v_perm_b32 v{24+n}, v{8+n}, v42, {TS[0]}")
    A("v_pk_add_f32 v[24:25], v[24:25], v[28:29]\nv_pk_add_f32 v[26:27], v[26:27], v[30:31]")
    stamp('h', 'fgat')
    reduce4(24)
    A("v_cvt_pk_bf16_f32 v24, v24, v24\nv_and_b32 v24, s64, v24\nv_mul_f32 v24, v24, v45\nv_cvt_pk_bf16_f32 v24, v24, v24\nv_and_b32 v24, s64, v24")
    A("v_add_f32 v24, v24, v44\nv_cvt_pk_bf16_f32 v24, v24, v24")
    A("s_mov_b32 exec_lo, s18\ns_mov_b32 exec_hi, s18")
    A("buffer_store_short v24, v43, s[44:47], 0 offen")
    stamp('h', 'end')
    dump_stamps('h')
    A("s_endpgm")
    A("L_epoch:\ns_mov_b64 exec, -1")
    A(f"v_lshlrev_b32 v5, 11, v0\ns_mov_b32 s14, {PBUF}\ns_mov_b32 s15, {PBUF + 64*PSTR}\ns_mov_b32 s16, {PBUF + 128*PSTR}\ns_mov_b32 s17, {PBUF + 192*PSTR}")
    def iss():
        for n in range(4): A(f"buffer_load_dwordx4 v[{8+4*n}:{11+4*n}], v5, s[36:39], s{14+n} offen sc1")
    def chk():
        for n in range(4): tagcheck(8+4*n, f"s[{6+2*n}:{7+2*n}]")
        A("s_or_b64 s[6:7], s[6:7], s[8:9]\ns_or_b64 s[10:11], s[10:11], s[12:13]\ns_or_b64 s[6:7], s[6:7], s[10:11]")
    simple_poll(iss, chk, 1)
    A("v_mov_b32 v8, s32\nv_mov_b32 v9, 0\ns_mov_b64 exec, 1")
    A("buffer_store_dword v8, v9, s[36:39], 0 offen sc1")
    A("L_end:\ns_endpgm\nL_codeend:")
    A('.section .rodata,"a"\n.p2align 6')
    A(f".amdhsa_kernel {NAME}_kernel")
    A(".amdhsa_next_free_vgpr 256\n.amdhsa_next_free_sgpr 102\n.amdhsa_accum_offset 256\n.amdhsa_group_segment_fixed_size 0\n.amdhsa_kernarg_size 96\n.amdhsa_user_sgpr_count 2\n.amdhsa_user_sgpr_kernarg_segment_ptr 1\n.amdhsa_system_sgpr_workgroup_id_x 1\n.end_amdhsa_kernel")
    return A.finalize(), stamps

if __name__ == "__main__":
    txt, st = gen()
    open(sys.argv[1] if len(sys.argv) > 1 else "k21.s", "w").write(txt)
```

```python
import sys, struct
from asmlib import Asm
NAME = "recurrent_scan__sliding_block_cached__glu_gated_reglu__decode"
def fbits(x): return struct.unpack('<I', struct.pack('<f', x))[0]

V_L, KW_L, KS_L, W1_L, MISC = 0, 65536, 122880, 131072, 159744
XN_L = V_L
PROG = 0
FL_A, FL_Q, FL_QK, FL_PUB, FL_X, FL_WO = 256, 260, 264, 268, 272, 276
WO1_L = 65536
HB = 320
Q_M = 512
RED = 1536
SC = 3584
P_L = KS_L
OB_L = KS_L + 2048
LDS_BYTES = 163840
PJF, PJS, OBF, OBS, PBUF, YBUF, DIAG = 0x290000, 0x2d0000, 0x60000, 0x100000, 0x190000, 0x210000, 0x320000
PSTR = 2048
PJH = 4 * 30720
OSTR = 2176
WS_REC = 0x400000
LIMIT = 20000
EV_K, EV_WO = 1, 1

def gen(keep=None, W=33, W2=41, pol_kv='nt', pol_w='nt', pol_w1='nt', diag=False, prefetch=2, rotk=5, nfast=40,
        qsleep=0, osleep=0, fake=0, slowcopy=1, npre=1, W3=41, touch=2, Wk=None, otouch=1, wdpos=6, Wi=45, Wl=45, rota=1, rotc=0, tail='wo1', wo0pos=8, mlat=1, yat=2, fgap=1, prestore=2, fsleep=0, pjshuf=0, kfirst=2, order='lhc', exp='', ypubat='V3', touchat='q', mask=1, slowat='V3', qdelay=0, Wk0=None, nk0w=8, nafter=8, wo1g=12, wdtail='', wdn=8, vbar=1, pipe=1, pgap=1, skipslow=12, sksleep=4, cprio=0, pubbar=0, hprio=0):
    A = Asm()
    WOR = 128; MO = 40
    uid = [0]
    def lab(p):
        uid[0] += 1; return f"L_{p}_{uid[0]}"
    stamps = {'c': [], 'l': [], 'h': []}
    def stamp(kind, name):
        if diag and (keep is None or name in keep):
            k = len(stamps[kind]); stamps[kind].append(name)
            A(f"s_memrealtime s[{72+2*k}:{73+2*k}]")
    def dump_stamps(kind):
        if not diag: return
        n = len(stamps[kind])
        A("s_waitcnt lgkmcnt(0)\ns_mov_b64 exec, 1")
        A("s_lshl_b32 s56, s2, 3\ns_add_u32 s56, s56, s3\ns_lshl_b32 s56, s56, 7")
        A(f"s_add_u32 s56, s56, {DIAG}\nv_mov_b32 v1, s56")
        for k in range(n):
            A(f"v_mov_b32 v2, s{72+2*k}\nv_mov_b32 v3, s{73+2*k}")
            A(f"buffer_store_dwordx2 v[2:3], v1, s[36:39], 0 offen offset:{8*k}\ns_nop 1")
        A("s_waitcnt vmcnt(0)")
    def srd(d, p, nrec, sub=None):
        if sub is not None: A(f"s_sub_u32 s{d}, s{p}, {sub}\ns_subb_u32 s{d+1}, s{p+1}, 0")
        else: A(f"s_mov_b32 s{d}, s{p}\ns_mov_b32 s{d+1}, s{p+1}")
        A(f"s_mov_b32 s{d+2}, {nrec}\ns_mov_b32 s{d+3}, 0x20000")
    def spin(vM, off, n, vt='v1', st='s56', sleep=1):
        l = lab('spin'); d = lab('spind')
        A(f"{l}:\nds_read_b32 {vt}, {vM} offset:{off}\ns_waitcnt lgkmcnt(0)\nv_readfirstlane_b32 {st}, {vt}")
        A(f"s_cmp_ge_u32 {st}, {n}")
        if sleep: A(f"s_cbranch_scc1 {d}\ns_sleep {sleep}\ns_branch {l}\n{d}:")
        else: A(f"s_cbranch_scc0 {l}")
    def signal(vM, off, vOne):
        A(f"s_mov_b64 exec, 1\nds_add_u32 {vM}, {vOne} offset:{off}\ns_mov_b64 exec, -1")
    def allred(op, x, t, rors):
        for r in rors: A(f"{op}_dpp {x}, {x}, {x} row_ror:{r} row_mask:0xf bank_mask:0xf")
        for sw in ('16', '32'): A(f"v_mov_b32 {t}, {x}\nv_permlane{sw}_swap_b32 {x}, {t}\n{op} {x}, {x}, {t}")
    def fspoll(issue, check, sfast, delta, sleep, onswitch=None, st1=None, first=None):
        l = lab('fp'); d = lab('fpd')
        A(f"s_mov_b32 s60, 0\ns_mov_b32 s61, {sfast}")
        if first:
            l2 = lab('fq'); issue('s61'); first(); A(f"s_branch {l2}\n{l}:"); issue('s61'); A(f"{l2}:\ns_waitcnt vmcnt(0)")
        else:
            A(f"{l}:"); issue('s61'); A("s_waitcnt vmcnt(0)")
        if st1 and diag and keep is None:
            sk = lab('st'); A(f"s_cmp_eq_u32 s60, 0\ns_cbranch_scc0 {sk}"); stamp(*st1); A(f"{sk}:")
        check()
        if fake: A("s_mov_b64 s[6:7], 0")
        A(f"s_cmp_eq_u64 s[6:7], 0\ns_cbranch_scc1 {d}")
        A(f"s_add_u32 s60, s60, 1\ns_cmp_eq_u32 s60, {nfast}\ns_cselect_b32 s59, {delta}, 0\ns_add_u32 s61, s61, s59")
        if onswitch:
            sk = lab('sw'); A(f"s_cmp_eq_u32 s60, {nfast}\ns_cbranch_scc0 {sk}"); onswitch(); A(f"{sk}:")
        if sleep: A(f"s_sleep {sleep}")
        A(f"s_mov_b64 exec, s[6:7]\ns_cmp_lt_u32 s60, {LIMIT}\ns_cbranch_scc1 {l}\n{d}:\ns_mov_b64 exec, -1")
    def tagcheck(r, dst, t0='v1', t1='v4'):
        A(f"v_perm_b32 {t0}, v{r+1}, v{r}, s66\nv_perm_b32 {t1}, v{r+3}, v{r+2}, s67\nv_or_b32 {t0}, {t0}, {t1}")
        A(f"v_cmp_ne_u32 {dst}, s32, {t0}")
    TAGSEL = "s_mov_b32 s62, 0x07060500\ns_mov_b32 s63, 0x07060501\ns_mov_b32 s68, 0x07060502\ns_mov_b32 s69, 0x07060503"
    TS = ['s62', 's63', 's68', 's69']
    CHKSEL = "s_mov_b32 s66, 0x0c0c0400\ns_mov_b32 s67, 0x04000c0c"
    MKTAG = "s_mul_i32 s32, s32, 1664525\ns_add_u32 s32, s32, 1013904223"

    A(f"; @launch grid=(256,1,1) block=(384,1,1) lds={LDS_BYTES}")
    A('.amdgcn_target "amdgcn-amd-amdhsa--gfx950"')
    A(f".text\n.globl {NAME}_kernel\n.p2align 8\n.type {NAME}_kernel,@function\n{NAME}_kernel:")
    if diag: A("s_memrealtime s[70:71]")
    A("s_cmp_ge_u32 s2, 256\ns_cbranch_scc1 L_end")
    A("s_load_dwordx16 s[4:19], s[0:1], 0\ns_load_dwordx8 s[20:27], s[0:1], 64")
    A("v_lshrrev_b32 v1, 6, v0\nv_and_b32 v0, 63, v0\nv_readfirstlane_b32 s3, v1")
    A("s_and_b32 s28, s2, 7\ns_lshr_b32 s29, s2, 3\ns_and_b32 s30, s29, 3\ns_lshr_b32 s31, s29, 2")
    FDEC = "s_lshl_b32 s99, s28, 2\ns_mul_i32 s100, s28, 3\ns_add_u32 s100, s100, 4\ns_min_u32 s99, s99, s100"
    FDEC2 = "s_lshl_b32 s99, s99, 6\ns_cmp_lt_u32 s28, 4\ns_cselect_b32 s101, 32, 24\ns_mul_i32 s100, s101, s31\ns_add_u32 s100, s100, s99"
    vK = [8 + i for i in range(8)]; vV = [16 + i for i in range(4)]; vW = [20 + i for i in range(7)]
    nk0 = 4 * npre
    def part_l():
        A("L_lstart:\ns_setprio 3")
        A("v_lshrrev_b32 v1, 5, v0\nv_and_b32 v2, 31, v0\nv_xor_b32 v6, v2, v1\nv_lshlrev_b32 v6, 4, v6")
        A(f"v_lshl_add_u32 v{vK[0]}, v1, 9, v6")
        for i in range(1, 8 if npre > 1 else 4): A(f"v_xor_b32 v{vK[i]}, {(2*i) << 4}, v{vK[0]}")
        A(f"s_lshl_b32 s57, s30, 8\ns_lshl_b32 s58, s28, 5\ns_add_u32 s57, s57, s58\ns_add_u32 s57, s57, s31\ns_add_u32 s57, s57, 24\ns_lshl_b32 s61, s57, 16")
        A("s_and_b32 s66, s29, 15\ns_lshl_b32 s66, s66, 12")
        A(f"s_movk_i32 s63, 4096\ns_add_u32 s64, s61, s66\ns_mov_b32 s42, {64 << 20}\ns_mov_b32 s43, 0x20000")
        A("s_waitcnt lgkmcnt(0)\ns_mov_b64 s[40:41], s[6:7]")
        for g in range(npre): kvgroup(g, True, Wi)
        A("s_branch L_loader")
    def part_h():
        A("L_hstart:")
        if prefetch:
            A("s_getpc_b64 s[56:57]\nL_pc:\nv_lshlrev_b32 v1, 7, v0\nglobal_load_dword v40, v1, s[56:57]\nv_add_u32 v1, 8192, v1")
            A("v_cmp_gt_u32 vcc, L_codeend-L_pc, v1\ns_mov_b64 exec, vcc\nglobal_load_dword v40, v1, s[56:57]\ns_mov_b64 exec, -1")
        A(f"v_lshlrev_b32 v2, 3, v0\nv_mov_b32 v4, 0\nv_mov_b32 v5, 0\nv_add_u32 v2, {MISC}, v2\nds_write_b64 v2, v[4:5]\ns_waitcnt lgkmcnt(0)\ns_barrier\ns_branch L_helper")
    def part_c():
        A("L_cstart:")
        A("v_lshrrev_b32 v5, 4, v0\nv_lshrrev_b32 v1, 5, v0\nv_bfe_u32 v12, v0, 3, 2\nv_lshl_add_u32 v122, v1, 3, v12\nv_and_b32 v1, 7, v0\nv_lshlrev_b32 v12, 1, v5\nv_xor_b32 v1, v1, v12\nv_lshlrev_b32 v123, 4, v1\nv_lshlrev_b32 v121, 4, v0")
        A(FDEC)
        A("s_add_u32 s56, s99, s31\ns_sub_u32 s56, s56, 4\ns_lshl_b32 s59, s28, 3\ns_lshr_b32 s60, s29, 1\ns_add_u32 s59, s59, s60\ns_movk_i32 s58, 3584\ns_cmp_lt_u32 s29, 16")
        A("s_cselect_b32 s33, s59, s56\ns_cselect_b32 s58, 8192, s58\ns_lshl_b32 s56, s33, 7\ns_and_b32 s57, s29, 1")
        A("s_mul_i32 s59, s57, 56\ns_and_b32 s60, s3, 1\ns_lshl_b32 s60, s60, 2\ns_add_u32 s59, s59, s60\ns_lshr_b32 s60, s3, 1\ns_add_u32 s59, s59, s60\ns_lshl_b32 s59, s59, 2\ns_mul_i32 s61, s59, s58")
        A("v_mad_u32_u24 v122, v122, s58, v123\ns_mul_i32 s46, s58, 448\ns_sub_u32 s46, s46, s56\ns_and_b32 s34, s28, 4\ns_add_u32 s34, s34, s29\ns_cmp_lt_u32 s34, 32\ns_cselect_b32 s46, s46, 0\ns_mov_b32 s47, 0x20000")
        A(f"s_lshl_b32 s62, s3, 10\ns_add_u32 m0, s62, {W1_L}\ns_lshl_b32 s59, s58, 5\ns_movk_i32 s42, 896\ns_mov_b32 s43, 0x20000\ns_movk_i32 s60, 4096\ns_mul_i32 s62, s3, s42")
        A("s_waitcnt lgkmcnt(0)")
        A("s_bitcmp0_b32 s29, 1\ns_cselect_b64 s[44:45], s[16:17], s[18:19]\ns_cmp_lt_u32 s29, 16\ns_cselect_b64 s[44:45], s[10:11], s[44:45]")
        A("s_add_u32 s40, s4, s62\ns_addc_u32 s41, s5, 0\ns_add_u32 s44, s44, s56\ns_addc_u32 s45, s45, 0")
        A("buffer_load_dwordx4 v[8:11], v121, s[40:43], 0 offen")
        for i in range(7):
            A(f"buffer_load_dwordx4 v122, s[44:47], s61 offen {pol_w1} lds")
            if i < 6: A("s_add_u32 m0, m0, s60\ns_add_u32 s61, s61, s59")
        A("s_barrier\ns_branch L_compute")
    def late_setup():
        A(FDEC); A(FDEC2)
        A(f"v_lshlrev_b32 v3, 2, v0\nv_add_u32 v3, {MISC}, v3\nv_mov_b32 v4, {MISC}")
        A(f"v_lshlrev_b32 v6, 1, v1\nv_xor_b32 v6, v6, v2\nv_lshlrev_b32 v6, 4, v6\nv_lshl_add_u32 v{vV[0]}, v1, 9, v6")
        for i in range(1, 4): A(f"v_xor_b32 v{vV[i]}, {(4*i) << 4}, v{vV[0]}")
        A("s_movk_i32 s58, 1171\ns_movk_i32 s59, 896")
        for m in range(7):
            A(f"v_add_u32 v1, {64*m}, v0\nv_mul_u32_u24 v2, s58, v1\nv_lshrrev_b32 v2, 16, v2")
            A(f"v_mul_u32_u24 v6, 56, v2\nv_sub_u32 v1, v1, v6\nv_and_b32 v6, 6, v2\nv_xor_b32 v1, v1, v6")
            A(f"v_mul_u32_u24 v2, s59, v2\nv_lshl_add_u32 v1, v1, 4, v2\nv_add_u32 v{vW[m]}, {(128 - 1024*m) & 0xffffffff}, v1")
        srd(48, 12, 4096 * 896 + 128, sub=128)
        A(f"s_lshl_b32 s58, s28, 9\ns_lshl_b32 s59, s31, 5\ns_add_u32 s58, s58, s59\ns_mul_i32 s65, s58, 896\ns_add_u32 s68, s65, {256*896}")
        srd(44, 8, 64 << 20); srd(52, 20, 0, sub=128); A("s_add_u32 s54, s100, s101\ns_mul_i32 s54, s54, 896\ns_add_u32 s54, s54, 128\ns_mul_i32 s69, s100, 896")
        if diag: srd(36, 26, WS_REC); A("s_mov_b64 s[72:73], s[70:71]"); stamps['l'].append('start')
    draining = [False]; issued = [0]; events = []; evn = [0]; EV = {}
    def after_load(Wn):
        issued[0] += 1
        if issued[0] >= Wn: A(f"s_waitcnt vmcnt({Wn-1})")
        flush_events(issued[0] - (Wn - 1))
    def flush_events(landed):
        while events and events[0][0] <= landed:
            _, val, name = events.pop(0)
            if name == 'V3' and vbar:
                assert draining[0]
                A("s_barrier")
            else: A(f"v_mov_b32 v5, {val}\nds_write_b32 v3, v5")
            if name in ('KW', 'V3', 'WD', 'WO1'): stamp('l', name)
    def add_event(name):
        evn[0] += 1; EV[name] = evn[0]; events.append((issued[0], evn[0], name))
    def force(name):
        for e in list(events):
            if e[2] == name:
                A(f"s_waitcnt vmcnt({issued[0] - e[0]})"); flush_events(e[0])
    def kvgroup(g, isk, Wn):
        regs, srdn = (vK, 40) if isk else (vV, 44)
        if g > 0 or not isk: A("s_add_u32 s66, s66, s63\ns_and_b32 s66, s66, 0xffff\ns_add_u32 s64, s61, s66")
        A(f"s_mov_b32 m0, {(KW_L if isk else V_L) + 4096*g}")
        for i in range(4):
            n = 4*g + i
            A(f"buffer_load_dwordx4 v{regs[n % len(regs)]}, s[{srdn}:{srdn+3}], s64 offen offset:{1024*i} {pol_kv} lds")
            after_load(Wn)
    def wgroup(sg, srdn, ldsbase, soff, Wn):
        P, hf = sg // 2, sg % 2
        A(f"s_mov_b32 m0, {ldsbase + 7168*P + 4096*hf}\ns_add_u32 s67, {soff}, {7168*P + 4096*hf}")
        for m in (range(4) if hf == 0 else range(4, 7)):
            A(f"buffer_load_dwordx4 v{vW[m]}, s[{srdn}:{srdn+3}], s67 offen offset:{1024*(m%4)} {pol_w} lds")
            after_load(Wn)
    WO0_L = V_L + 36864
    tgt = {'l': ('L_lstart', 's_cmp_eq_u32 s3, 4'), 'h': ('L_hstart', 's_cmp_eq_u32 s3, 5'), 'c': ('L_cstart', 's_cmp_lt_u32 s3, 4')}
    for ch in order[1:]: A(f"{tgt[ch][1]}\ns_cbranch_scc1 {tgt[ch][0]}")
    for ch in order: {'l': part_l, 'h': part_h, 'c': part_c}[ch]()
    A("; ---------------- loader\nL_loader:")
    if npre <= 1:
        for i in range(4, 8): A(f"v_xor_b32 v{vK[i]}, {(2*i) << 4}, v{vK[0]}")
    A("s_barrier")
    side = [('wo0', g) for g in range(8)] + [('wd', g) for g in range(8 - wdn if wdtail else 8)]
    def doside(Wi=Wi):
        kind, g = side.pop(0)
        if kind == 'wo0':
            wgroup(g, 48, WO0_L, 's65', Wi)
            if g == 7: add_event('WO0')
        else:
            if g == 0: spin('v4', FL_A, 4)
            wgroup(g, 52, W1_L, 's69', Wi)
    kf = max(kfirst, npre + 1)
    for g in range(npre, 16):
        Wc = Wk0 if (Wk0 and g < nk0w) else Wi
        kvgroup(g, True, Wc)
        if g == kf - 1: late_setup()
        if g == 9 and wdtail and wdn == 8: spin('v4', FL_A, 4)
        if g >= kf - 1 and side: doside(Wc)
    while side: doside()
    add_event('KW')
    for g in range(16):
        if g == 9: force('WO0'); spin('v4', FL_WO, 4)
        nin = 8 - nafter
        lo = (g - wo1g) * nin // (16 - wo1g) if g >= wo1g else 0
        hi = (g + 1 - wo1g) * nin // (16 - wo1g) if g >= wo1g else 0
        for sg in range(lo, hi):
            if sg == 0: force('KW'); spin('v4', FL_QK, 4)
            wgroup(sg, 48, KW_L, 's68', Wi)
            if sg == 7: add_event('WO1')
        kvgroup(g, False, Wi if (g >= wo1g and nin) else W)
        if g % 4 == 3: add_event(f'V{g//4}')
    if nafter == 8: force('KW'); spin('v4', FL_QK, 4)
    def wdt():
        for g in range(8 - wdn, 8): wgroup(g, 52, W1_L, 's69', Wl)
        add_event('WD')
    if wdtail == 'first': wdt()
    for g in range(8 - nafter, 8): wgroup(g, 48, KW_L, 's68', Wl)
    if nafter: add_event('WO1')
    if wdtail == 'last': wdt()
    draining[0] = True
    while events:
        A(f"s_waitcnt vmcnt({issued[0] - events[0][0]})")
        flush_events(events[0][0])
    dump_stamps('l')
    A("s_endpgm")

    A("; ---------------- compute")
    A("L_compute:")
    if cprio: A(f"s_setprio {cprio}")
    vM = 'v2'; vOne = 'v3'
    A(f"v_mov_b32 {vM}, {MISC}\nv_mov_b32 {vOne}, 1")
    A("v_and_b32 v4, 3, v0\nv_bfe_u32 v6, v0, 2, 2\nv_and_b32 v7, 15, v0")
    A("s_load_dword s32, s[26:27], 0")
    srd(36, 26, WS_REC)
    if diag: A("s_mov_b64 s[72:73], s[70:71]"); stamps['c'].append('start')
    A("s_cmp_lt_u32 s34, 32\ns_cbranch_scc0 L_norole")
    A("v_add_u32 v120, s62, v121\nv_cmp_gt_u32 s[52:53], 56, v0")
    A(f"v_lshrrev_b32 v12, 2, v0\nv_lshlrev_b32 v12, 7, v12\nv_lshl_add_u32 v12, v4, 3, v12\nv_bfe_u32 v1, v0, 3, 2\nv_xor_b32 v1, s3, v1\nv_lshl_add_u32 v124, v1, 5, v12\nv_add_u32 v124, {W1_L}, v124")
    A(f"v_add_u32 v120, {XN_L}, v120\ns_movk_i32 s56, 896\nv_mul_u32_u24 v123, s56, v4\nv_lshl_add_u32 v123, v5, 4, v123\ns_mul_i32 s56, s57, 448\ns_add_u32 s56, s56, {XN_L}\nv_add_u32 v123, s56, v123")
    A(f"s_lshl_b32 s56, s3, 6\ns_add_u32 s56, s56, {MISC + RED}\nv_lshl_add_u32 v125, v5, 4, s56\nv_lshl_add_u32 v125, v4, 8, v125")
    A("s_waitcnt vmcnt(7)")
    A("s_mov_b32 s56, 0xffff0000")
    for i in range(4): A(f"v_lshlrev_b32 v{24+2*i}, 16, v{8+i}\nv_and_b32 v{25+2*i}, s56, v{8+i}")
    A("v_pk_add_f32 v[32:33], v[24:25], v[26:27]\nv_pk_add_f32 v[34:35], v[28:29], v[30:31]\nv_pk_add_f32 v[32:33], v[32:33], v[34:35]\nv_add_f32 v32, v32, v33")
    allred('v_add_f32', 'v32', 'v33', (1, 2, 4, 8))
    A(f"v_mul_f32 v32, {hex(fbits(-1.0/448))}, v32")
    A("v_cndmask_b32 v34, 0, v32, s[52:53]\nv_mov_b32 v35, v34")
    for i in range(4): A(f"v_pk_add_f32 v[{40+2*i}:{41+2*i}], v[{24+2*i}:{25+2*i}], v[34:35]")
    A("v_pk_mul_f32 v[36:37], v[40:41], v[40:41]\nv_pk_mul_f32 v[38:39], v[42:43], v[42:43]")
    A("v_pk_fma_f32 v[36:37], v[44:45], v[44:45], v[36:37]\nv_pk_fma_f32 v[38:39], v[46:47], v[46:47], v[38:39]")
    A("v_pk_add_f32 v[36:37], v[36:37], v[38:39]\nv_add_f32 v36, v36, v37")
    allred('v_add_f32', 'v36', 'v37', (1, 2, 4, 8))
    A(f"v_mul_f32 v36, {hex(fbits(1.0/448))}, v36")
    A("v_cvt_pk_bf16_f32 v36, v36, v32")
    A("v_and_b32 v32, s56, v36\nv_lshlrev_b32 v36, 16, v36")
    A(f"v_add_f32 v36, {hex(fbits(1e-5))}, v36\nv_mov_b32 v33, v32\nv_cvt_pk_bf16_f32 v36, v36, v36\nv_and_b32 v36, s56, v36")
    A("v_sqrt_f32 v36, v36")
    for i in range(4): A(f"v_pk_add_f32 v[{24+2*i}:{25+2*i}], v[{24+2*i}:{25+2*i}], v[32:33]")
    A("v_cvt_pk_bf16_f32 v36, v36, v36\nv_and_b32 v36, s56, v36\nv_rcp_f32 v36, v36")
    for i in range(4): A(f"v_cvt_pk_bf16_f32 v{8+i}, v{24+2*i}, v{25+2*i}")
    A("v_mov_b32 v37, v36")
    for i in range(4): A(f"v_lshlrev_b32 v{24+2*i}, 16, v{8+i}\nv_and_b32 v{25+2*i}, s56, v{8+i}")
    for i in range(4): A(f"v_pk_mul_f32 v[{24+2*i}:{25+2*i}], v[{24+2*i}:{25+2*i}], v[36:37]")
    for i in range(4): A(f"v_cvt_pk_bf16_f32 v{8+i}, v{24+2*i}, v{25+2*i}")
    A("s_mov_b64 exec, s[52:53]\nds_write_b128 v120, v[8:11]\ns_waitcnt vmcnt(0) lgkmcnt(0)")
    signal(vM, FL_X, vOne)
    spin(vM, FL_X, 4, sleep=0)
    stamp('c', 'w1')
    for k in range(7):
        A(f"ds_read_b128 v[{8+4*k}:{11+4*k}], v123 offset:{64*k}")
        for a_ in range(2): A(f"ds_read_b64_tr_b16 v[{40+4*k+2*a_}:{41+4*k+2*a_}], v124 offset:{4096*k + 2048*a_}")
        if k >= 3:
            A("s_waitcnt lgkmcnt(9)")
            kk = k - 3
            A(f"v_mfma_f32_16x16x32_bf16 v[88:91], v[{40+4*kk}:{43+4*kk}], v[{8+4*kk}:{11+4*kk}], {'v[88:91]' if kk else '0'}")
    for kk in range(4, 7):
        A(f"s_waitcnt lgkmcnt({3*(6-kk)})")
        A(f"v_mfma_f32_16x16x32_bf16 v[88:91], v[{40+4*kk}:{43+4*kk}], v[{8+4*kk}:{11+4*kk}], v[88:91]")
    A("s_mov_b32 exec_lo, 0x000f000f\ns_mov_b32 exec_hi, 0x000f000f\nds_write_b128 v125, v[88:91]\ns_waitcnt lgkmcnt(0)")
    A("L_norole:\ns_waitcnt vmcnt(0)")
    signal(vM, FL_A, vOne)
    A("s_waitcnt lgkmcnt(0)")
    A(MKTAG)
    A("L_adone:")
    A(f"v_lshrrev_b32 v10, 2, v0\ns_movk_i32 s56, 896\nv_lshlrev_b32 v8, 3, v4\nv_mad_u32_u24 v8, v10, s56, v8")
    A(f"v_add_u32 v8, {WO1_L}, v8\nv_bfe_u32 v1, v0, 3, 2\ns_mul_i32 s56, s3, 7")
    for i in range(7):
        A(f"v_xor_b32 v9, s56, v1\nv_lshl_add_u32 v{200+i}, v9, 5, v8\nv_add_u32 v{184+i}, {WO0_L - WO1_L}, v{200+i}")
        if i < 6: A("s_add_u32 s56, s56, 1")
    A(TAGSEL); A(CHKSEL)
    A(f"s_lshl_b32 s56, s3, 14\ns_add_u32 s56, s56, {KW_L}\nv_lshl_add_u32 v8, v7, 9, s56\nv_xor_b32 v9, v5, v7")
    for m in range(4): A(f"v_xor_b32 v1, {4*m}, v9\nv_lshl_add_u32 v{208+m}, v1, 4, v8")
    A(f"v_and_b32 v11, 1, v0\nv_lshlrev_b32 v1, 9, v11\nv_lshl_add_u32 v212, v5, 4, v1\nv_add_u32 v212, {MISC + Q_M}, v212")
    A(f"s_lshl_b32 s56, s3, 9\ns_add_u32 s56, s56, {P_L}\nv_lshl_add_u32 v1, v11, 8, s56\nv_lshl_add_u32 v213, v5, 4, v1")
    A("v_lshl_add_u32 v1, v5, 6, s56\nv_bfe_u32 v8, v0, 1, 2\nv_lshl_add_u32 v1, v8, 4, v1\nv_bfe_u32 v12, v0, 3, 1\nv_lshl_add_u32 v1, v12, 3, v1\nv_lshl_add_u32 v218, v11, 2, v1")
    A(f"s_lshl_b32 s56, s3, 7\ns_add_u32 s56, s56, {MISC + SC}\nv_lshl_add_u32 v214, v0, 2, s56")
    A(f"v_lshlrev_b32 v215, 3, v0\nv_add_u32 v215, {MISC + SC}, v215")
    A(f"v_lshlrev_b32 v8, 9, v10\nv_lshl_add_u32 v8, v4, 3, v8\nv_and_b32 v9, 7, v10\ns_lshl_b32 s56, s3, 2")
    for t in range(4):
        A(f"v_xor_b32 v1, s56, v9\nv_lshl_add_u32 v{192+t}, v1, 5, v8")
        if t < 3: A("s_add_u32 s56, s56, 1")
    A("v_bfe_u32 v1, v0, 2, 1\nv_lshlrev_b32 v1, 8, v1\nv_lshl_add_u32 v1, v5, 6, v1\nv_lshl_add_u32 v219, v4, 4, v1\nv_bfe_u32 v8, v0, 1, 2")
    A(f"s_lshl_b32 s56, s30, 3\ns_add_u32 s56, s56, s28\ns_mul_i32 s56, s56, {8*OSTR}\ns_add_u32 s34, s56, {OBF}")
    A(f"s_mul_i32 s56, s31, {OSTR}\ns_add_u32 s35, s34, s56\ns_lshl_b32 s56, s3, 9\ns_add_u32 s48, s35, s56\ns_add_u32 s49, s48, {OBS - OBF}\ns_add_u32 s50, s35, {OBS - OBF}")
    A("v_cmp_eq_u32 s[8:9], 1, v8\nv_cmp_eq_u32 s[10:11], 2, v8\nv_cmp_eq_u32 s[12:13], 3, v8")
    A(f"v_lshrrev_b32 v1, 3, v0\ns_movk_i32 s56, {OSTR}\nv_mul_u32_u24 v1, s56, v1\nv_add_u32 v221, 2048, v1\nv_and_b32 v9, 7, v0\nv_lshl_add_u32 v1, v9, 4, v1\ns_lshl_b32 s56, s31, 8\nv_add_u32 v220, s56, v1")
    A(f"s_lshl_b32 s56, s3, 7\ns_add_u32 s56, s56, {OB_L}\nv_lshl_add_u32 v1, v11, 6, s56\nv_lshrrev_b32 v8, 5, v0\nv_lshl_add_u32 v1, v8, 5, v1\nv_bfe_u32 v8, v0, 2, 1\nv_lshl_add_u32 v1, v8, 4, v1")
    A("v_bfe_u32 v8, v0, 1, 1\nv_lshl_add_u32 v1, v8, 3, v1\nv_lshl_add_u32 v1, v12, 2, v1\nv_and_b32 v8, 1, v5\nv_lshl_add_u32 v222, v8, 1, v1\nv_cmp_eq_u32 s[14:15], 1, v11")
    A("v_lshl_add_u32 v223, v5, 4, s56")
    A("v_cmp_eq_u32 s[52:53], 1, v8\nv_cmp_eq_u32 s[54:55], 1, v12")
    A(f"s_lshl_b32 s56, s30, 6\ns_lshl_b32 s57, s28, 3\ns_add_u32 s56, s56, s57\ns_add_u32 s56, s56, s31\ns_lshl_b32 s56, s56, 11")
    A(f"s_lshl_b32 s57, s3, 9\ns_add_u32 s56, s56, s57\ns_add_u32 s33, s56, {PBUF}")
    A("v_lshlrev_b32 v1, 4, v7\nv_lshl_add_u32 v207, v5, 7, v1\nv_mov_b32 v199, s32")
    A("s_getreg_b32 s56, hwreg(HW_REG_XCC_ID)\ns_and_b32 s56, s56, 15\ns_add_u32 s56, s56, 1\ns_mul_i32 s56, s56, 0x9e3779b1\ns_xor_b32 s47, s32, s56\nv_mov_b32 v198, s47\nv_mov_b32 v197, 0x80\nv_lshlrev_b32 v124, 4, v0")
    A(f"s_mov_b32 s64, 0xffff0000\ns_mov_b32 s65, {hex(fbits(1.4426950408889634/16))}\ns_mov_b32 s51, 0xffffff00")
    spin(vM, PROG, EV['WO0'], sleep=1)
    def pull(h):
        for i in range(7):
            for a_ in range(2):
                r = WOR + 28*h + 4*i + 2*a_
                A(f"ds_read_b64_tr_b16 v[{r}:{r+1}], v{(184 if h == 0 else 200)+i} offset:{14336*a_}")
    pull(0)
    A("s_waitcnt lgkmcnt(0)")
    signal(vM, FL_WO, vOne)
    if prestore == 1:
        A("v_not_b32 v8, v198\nv_not_b32 v9, v198\nv_not_b32 v10, v198\nv_not_b32 v11, v198\nv_lshlrev_b32 v12, 4, v0")
        A("s_mov_b32 exec_hi, 0\nbuffer_store_dwordx4 v[8:11], v12, s[36:39], s48 offen\ns_mov_b64 exec, -1")
    spin(vM, FL_Q, 1)
    stamp('c', 'q')
    for k in range(8): A(f"ds_read_b128 v[{8+4*k}:{11+4*k}], v212 offset:{64*k}")
    spin(vM, PROG, EV['KW'], sleep=0)
    for k in range(8):
        for t in range(2):
            r = 40 + 8*k + 4*t
            A(f"ds_read_b128 v[{r}:{r+3}], v{208 + (k&3)} offset:{t*8192 + (k>>2)*256}")
    for k in range(8):
        A(f"s_waitcnt lgkmcnt({14 - 2*k})")
        for t in range(2):
            r = 40 + 8*k + 4*t; d = 104 + 4*t
            c = f"v[{d}:{d+3}]" if k else "0"
            A(f"v_mfma_f32_16x16x32_bf16 v[{d}:{d+3}], v[{8+4*k}:{11+4*k}], v[{r}:{r+3}], {c}")
    A("v_cndmask_b32 v8, v104, v108, s[52:53]\nv_cndmask_b32 v9, v105, v109, s[52:53]\nv_cvt_pk_bf16_f32 v8, v8, v9")
    A("s_mov_b32 exec_hi, 0\nds_write_b32 v214, v8\ns_waitcnt lgkmcnt(0)")
    signal(vM, FL_QK, vOne)
    spin(vM, FL_QK, 4, sleep=0)
    A("ds_read_b64 v[8:9], v215\ns_waitcnt lgkmcnt(0)")
    A("v_lshlrev_b32 v16, 16, v8\nv_lshlrev_b32 v17, 16, v9\nv_and_b32 v18, s64, v8\nv_and_b32 v19, s64, v9")
    A("v_max_f32 v24, v16, v17\nv_max_f32 v25, v18, v19")
    A("v_permlane32_swap_b32 v24, v25\nv_max_f32 v24, v24, v25")
    A("v_mov_b32 v25, v24\nv_permlane16_swap_b32 v24, v25\nv_max_f32 v24, v24, v25")
    for r in (1, 2, 4, 8): A(f"v_max_f32_dpp v24, v24, v24 row_ror:{r} row_mask:0xf bank_mask:0xf")
    A("v_mul_f32 v24, s65, v24\nv_and_b32 v24, s51, v24")
    A("v_readlane_b32 s56, v24, 0\nv_readlane_b32 s57, v24, 32\nv_mov_b32 v25, s65")
    A("v_fma_f32 v16, v16, v25, -s56\nv_fma_f32 v17, v17, v25, -s56\nv_fma_f32 v18, v18, v25, -s57\nv_fma_f32 v19, v19, v25, -s57")
    for i in range(4): A(f"v_exp_f32 v{16+i}, v{16+i}")
    A("v_cvt_pk_bf16_f32 v8, v16, v17\nv_cvt_pk_bf16_f32 v9, v18, v19")
    A("ds_write2st64_b32 v218, v8, v9 offset0:0 offset1:1")
    A("v_add_f32 v26, v16, v17\nv_add_f32 v27, v18, v19")
    A("v_permlane32_swap_b32 v26, v27\nv_add_f32 v26, v26, v27\ns_waitcnt lgkmcnt(0)")
    for k in range(4): A(f"ds_read_b128 v[{8+4*k}:{11+4*k}], v213 offset:{64*k}")
    A("v_mov_b32 v27, v26\nv_permlane16_swap_b32 v26, v27\nv_add_f32 v26, v26, v27")
    for r in (1, 2, 4, 8): A(f"v_add_f32_dpp v26, v26, v26 row_ror:{r} row_mask:0xf bank_mask:0xf")
    A("s_cmp_lg_u32 s3, 0\ns_cbranch_scc1 L_noml")
    A("v_readlane_b32 s58, v26, 32\nv_mov_b32 v28, s56\nv_mov_b32 v29, v26\nv_mov_b32 v30, s57\nv_mov_b32 v31, s58")
    for r in range(4): A(f"v_perm_b32 v{32+r}, v{28+r}, v198, {TS[r]}")
    for r in range(4): A(f"v_perm_b32 v{120+r}, v{28+r}, v199, {TS[r]}")
    A("s_mov_b64 exec, 0xff\nbuffer_store_dwordx4 v[32:35], v124, s[36:39], s35 offen offset:2048")
    A("s_mov_b64 exec, -1\nL_noml:")
    if prestore == 2:
        A("buffer_load_dword v127, v220, s[36:39], s34 offen sc1\nbuffer_load_dword v127, v220, s[36:39], s34 offen offset:128 sc1")
    stamp('c', 'p')
    for i in range(56): A(f"v_mov_b32 v{MO+i}, 0")
    for k in range(4):
        if k == 3 and vbar: A("s_barrier")
        else: spin(vM, PROG, EV[f'V{k}'], sleep=0)
        if k == 3: stamp('c', 'V')
        if k == mlat: A("buffer_load_dwordx4 v[96:99], v221, s[36:39], s34 offen sc1")
        for t in range(4):
            for a in range(2):
                r = 224 + 16*(k&1) + 4*t + 2*a
                A(f"ds_read_b64_tr_b16 v[{r}:{r+1}], v{192+t} offset:{k*16384 + a*8192}")
        for t in range(4):
            A(f"s_waitcnt lgkmcnt({6 - 2*t})")
            r = 224 + 16*(k&1) + 4*t; d = 104 + 4*t
            c = f"v[{d}:{d+3}]" if k else "0"
            A(f"v_mfma_f32_16x16x32_bf16 v[{d}:{d+3}], v[{r}:{r+3}], v[{8+4*k}:{11+4*k}], {c}")
    for t in range(1, 4):
        for r in range(4): A(f"v_cndmask_b32 v{104+r}, v{104+r}, v{104+4*t+r}, s[{6+2*t}:{7+2*t}]")
    for r in range(4): A(f"v_perm_b32 v{104+r}, v{104+r}, v198, {TS[r]}")
    A("s_mov_b32 exec_lo, 0x00ff00ff\ns_mov_b32 exec_hi, 0x00ff00ff")
    A("buffer_store_dwordx4 v[104:107], v219, s[36:39], s48 offen")
    A("s_mov_b64 exec, -1")
    stamp('c', 'opub')
    def fail(back, remask=False):
        sk = lab('sw')
        A(f"s_add_u32 s60, s60, 1\ns_cmp_eq_u32 s60, {nfast}\ns_cbranch_scc0 {sk}")
        A(f"s_add_u32 s61, s34, {OBS - OBF}\ns_mov_b32 s46, s32")
        for r in range(4): A(f"v_perm_b32 v{104+r}, v{104+r}, v199, {TS[r]}")
        A("s_mov_b32 exec_lo, 0x00ff00ff\ns_mov_b32 exec_hi, 0x00ff00ff\nbuffer_store_dwordx4 v[104:107], v219, s[36:39], s49 offen sc1\ns_mov_b64 exec, -1")
        A(f"s_cmp_lg_u32 s3, 0\ns_cbranch_scc1 {sk}\ns_mov_b64 exec, 0xff\nbuffer_store_dwordx4 v[120:123], v124, s[36:39], s50 offen offset:2048 sc1\ns_mov_b64 exec, -1")
        A(f"{sk}:")
    def tchk(r, dst, t0, t1):
        A(f"v_perm_b32 {t0}, v{r+1}, v{r}, s66\nv_perm_b32 {t1}, v{r+3}, v{r+2}, s67\nv_or_b32 {t0}, {t0}, {t1}\nv_cmp_ne_u32 {dst}, s46, {t0}")
    def oiss(r): A(f"buffer_load_dwordx4 v[{r}:{r+3}], v220, s[36:39], s61 offen sc1\nbuffer_load_dwordx4 v[{r+4}:{r+7}], v220, s[36:39], s61 offen offset:128 sc1")
    A("s_mov_b32 s60, 0\ns_mov_b32 s61, s34\ns_mov_b32 s46, s47")
    oiss(8)
    lm = lab('ml'); lmd = lab('mld')
    A(f"s_waitcnt vmcnt(3)\n{lm}:")
    tchk(96, 'vcc', 'v24', 'v25')
    if fake: A("s_mov_b64 vcc, 0")
    A(f"s_cmp_eq_u64 vcc, 0\ns_cbranch_scc1 {lmd}")
    fail(lm)
    A(f"buffer_load_dwordx4 v[96:99], v221, s[36:39], s61 offen sc1\ns_waitcnt vmcnt(0)\ns_cmp_lt_u32 s60, {LIMIT}\ns_cbranch_scc1 {lm}\n{lmd}:")
    stamp('c', 'mlok')
    if diag and (keep is None or 'nml' in keep):
        k = len(stamps['c']); stamps['c'].append('nml'); A(f"s_mov_b32 s{72+2*k}, s60\ns_mov_b32 s{73+2*k}, 0")
    A("v_and_b32 v96, s51, v96\nv_and_b32 v98, s51, v98\nv_perm_b32 v97, v97, v197, s62\nv_perm_b32 v99, v99, v197, s62\nv_mov_b32 v24, v96\nv_mov_b32 v25, v98")
    A("v_permlane32_swap_b32 v24, v25\nv_max_f32 v24, v24, v25\nv_mov_b32 v25, v24\nv_permlane16_swap_b32 v24, v25\nv_max_f32 v24, v24, v25")
    A("v_max_f32_dpp v24, v24, v24 row_ror:8 row_mask:0xf bank_mask:0xf\nv_mov_b32 v25, v24\nv_permlane32_swap_b32 v24, v25")
    A("v_sub_f32 v96, v96, v24\nv_sub_f32 v98, v98, v25\nv_exp_f32 v100, v96\nv_exp_f32 v102, v98")
    A("v_mul_f32 v24, v97, v100\nv_mul_f32 v25, v99, v102")
    A("v_permlane32_swap_b32 v24, v25\nv_add_f32 v24, v24, v25\nv_mov_b32 v25, v24\nv_permlane16_swap_b32 v24, v25\nv_add_f32 v24, v24, v25")
    A("v_add_f32_dpp v24, v24, v24 row_ror:8 row_mask:0xf bank_mask:0xf\nv_rcp_f32 v24, v24\nv_mov_b32 v25, v24\nv_permlane32_swap_b32 v24, v25")
    A("v_cndmask_b32 v100, v100, v102, s[14:15]\nv_cndmask_b32 v24, v24, v25, s[14:15]\nv_mul_f32 v100, v100, v24\nv_mov_b32 v101, v100")
    lo = lab('op'); od = lab('od')
    stamp('c', 'scale')
    if diag and keep and 'poll1' in keep:
        A("s_waitcnt vmcnt(0)"); stamp('c', 'poll1')
    if pipe: oiss(8)
    A(f"{lo}:\ns_waitcnt vmcnt({2 if pipe else 0})")
    tchk(8, 's[6:7]', 'v24', 'v25'); tchk(12, 'vcc', 'v26', 'v27')
    A("s_or_b64 vcc, vcc, s[6:7]")
    if fake: A("s_mov_b64 vcc, 0")
    A(f"s_cbranch_vccz {od}\ns_mov_b64 s[8:9], vcc\ns_mov_b64 exec, -1")
    fail(lo, True)
    if osleep: A(f"s_sleep {osleep}")
    A("s_mov_b64 exec, s[8:9]")
    oiss(8)
    A(f"s_cmp_lt_u32 s60, {LIMIT}\ns_cbranch_scc1 {lo}\ns_waitcnt vmcnt(0)")
    A(f"{od}:\ns_mov_b64 exec, -1\nds_read_b32 v1, {vM} offset:{PROG}")
    if mask:
        for n in (0, 1, 4, 5, 2, 3, 6, 7): A(f"v_perm_b32 v{24+n}, v{8+n}, v197, {TS[0]}")
    A("v_pk_mul_f32 v[24:25], v[24:25], v[100:101]\nv_pk_mul_f32 v[28:29], v[28:29], v[100:101]\nv_pk_mul_f32 v[26:27], v[26:27], v[100:101]\nv_pk_mul_f32 v[30:31], v[30:31], v[100:101]")
    stamp('c', 'ogat')
    for r in range(4): A(f"v_permlane32_swap_b32 v{24+r}, v{28+r}")
    A("v_pk_add_f32 v[24:25], v[24:25], v[28:29]\nv_pk_add_f32 v[26:27], v[26:27], v[30:31]")
    A("v_permlane16_swap_b32 v24, v25\nv_permlane16_swap_b32 v26, v27\nv_add_f32 v24, v24, v25\nv_add_f32 v26, v26, v27")
    for x in (24, 26): A(f"v_add_f32_dpp v{x}, v{x}, v{x} row_ror:8 row_mask:0xf bank_mask:0xf")
    A("v_cndmask_b32 v24, v24, v26, s[54:55]\nv_cvt_pk_bf16_f32 v24, v24, v24")
    A("ds_write_b16 v222, v24\ns_waitcnt lgkmcnt(0)\nv_readfirstlane_b32 s56, v1")
    for i in range(7):
        m = 0x00010001 << i
        A(f"s_mov_b32 exec_lo, {hex(m)}\ns_mov_b32 exec_hi, {hex(m)}")
        A(f"ds_read_b128 v[{MO+8*i}:{MO+3+8*i}], v223\nds_read_b128 v[{MO+4+8*i}:{MO+7+8*i}], v223 offset:64")
    lw = lab('w1ok')
    A(f"s_mov_b64 exec, -1\ns_cmp_ge_u32 s56, {EV['WO1']}\ns_cbranch_scc1 {lw}")
    spin(vM, PROG, EV['WO1'], sleep=0)
    A(f"{lw}:")
    stamp('c', 'o')
    if diag and (keep is None or 'npoll' in keep):
        k = len(stamps['c']); stamps['c'].append('npoll'); A(f"s_mov_b32 s{72+2*k}, s60\ns_mov_b32 s{73+2*k}, 0")
    for h in range(2):
        for i in range(7):
            A(f"s_waitcnt lgkmcnt({12 - 2*i*h})")
            r = WOR + 28*h + 4*i
            c = "v[108:111]" if (h or i) else "0"
            A(f"v_mfma_f32_16x16x32_bf16 v[108:111], v[{r}:{r+3}], v[{MO+8*i+4*h}:{MO+3+8*i+4*h}], {c}")
            if h == 0:
                for a_ in range(2):
                    r = WOR + 28 + 4*i + 2*a_
                    A(f"ds_read_b64_tr_b16 v[{r}:{r+1}], v{200+i} offset:{14336*a_}")
    A("s_mov_b32 exec_lo, 0x00ff00ff\ns_mov_b32 exec_hi, 0x00ff00ff")
    for r in range(4): A(f"v_perm_b32 v{108+r}, v{108+r}, v199, {TS[r]}")
    A("buffer_store_dwordx4 v[108:111], v207, s[36:39], s33 offen sc1")
    if pubbar: A("s_barrier")
    else: signal(vM, FL_PUB, vOne)
    stamp('c', 'pub')
    dump_stamps('c')
    A("s_cmp_eq_u32 s2, 255\ns_cbranch_scc0 L_end\ns_cmp_eq_u32 s3, 0\ns_cbranch_scc1 L_epoch\ns_endpgm")

    A("; ---------------- helper")
    A("L_helper:")
    A(f"v_mov_b32 {vM}, {MISC}\nv_mov_b32 {vOne}, 1")
    A("s_load_dword s32, s[26:27], 0"); A(FDEC); A(FDEC2)
    srd(36, 26, WS_REC); srd(40, 4, 3584); srd(44, 22, 3584)
    if diag: A("s_mov_b64 s[72:73], s[70:71]"); stamps['h'].append('start')
    A(f"s_mul_i32 s56, s30, 30720\ns_add_u32 s56, s56, {PJF}\ns_lshl_b32 s57, s28, 11\ns_add_u32 s34, s56, s57")
    A(f"s_lshl_b32 s57, s100, 2\ns_add_u32 s56, s56, s57\ns_add_u32 s48, s56, {4096*4}")
    A(f"v_lshlrev_b32 v5, 4, v0\nv_add_u32 v56, {PJH}, v5\nv_lshlrev_b32 v6, 3, v0\nv_add_u32 v7, {MISC + Q_M}, v6")
    A(f"s_lshr_b32 s56, s101, 2\nv_cmp_gt_u32 s[54:55], s56, v0\nv_mov_b32 v46, 0x7ff00000\nv_cndmask_b32 v46, v46, v5, s[54:55]\nv_add_u32 v47, {1792*4}, v46\nv_add_u32 v57, {PJH}, v46\nv_add_u32 v58, {PJH}, v47")
    A(f"v_and_b32 v9, 3, v0\nv_lshlrev_b32 v9, 4, v9\nv_bfe_u32 v10, v0, 2, 1\nv_lshl_add_u32 v9, v10, 3, v9\nv_add_u32 v48, {MISC + HB}, v9\nv_and_b32 v1, 1, v0")
    A(f"v_lshrrev_b32 v11, 4, v0\nv_lshlrev_b32 v49, 4, v11\nv_add_u32 v49, {MISC + HB}, v49")
    A(f"v_lshrrev_b32 v10, 2, v0\ns_movk_i32 s56, 896\nv_and_b32 v9, 3, v0\nv_lshlrev_b32 v9, 3, v9\nv_mad_u32_u24 v9, v10, s56, v9\nv_add_u32 v9, {W1_L}, v9\nv_bfe_u32 v10, v0, 3, 2")
    for m in range(4): A(f"v_xor_b32 v12, {m}, v10\nv_lshl_add_u32 v{50+m}, v12, 5, v9")
    A("v_and_b32 v9, 7, v0\nv_lshlrev_b32 v9, 4, v9\nv_lshl_add_u32 v9, v11, 7, v9\nv_bfe_u32 v10, v0, 3, 1\nv_lshl_add_u32 v54, v10, 9, v9")
    A(f"s_lshl_b32 s56, s30, 6\ns_lshl_b32 s57, s28, 3\ns_add_u32 s56, s56, s57\ns_add_u32 s56, s56, s31\ns_lshl_b32 s56, s56, 11\ns_add_u32 s49, s56, {YBUF}")
    for i in range(56): A(f"v_mov_b32 v{128+i}, 0")
    A("s_lshr_b32 s35, s28, 1\ns_and_b32 s56, s28, 1\ns_lshl_b32 s56, s56, 3\ns_add_u32 s33, s56, s31")
    A("v_lshrrev_b32 v10, 1, v0\nv_lshlrev_b32 v9, 4, v1\nv_lshl_add_u32 v41, v10, 11, v9")
    A("v_bfe_u32 v10, v0, 4, 1\nv_lshrrev_b32 v11, 5, v0\nv_lshl_add_u32 v10, v10, 1, v11\nv_lshl_add_u32 v10, v1, 4, v10")
    A("s_lshr_b32 s56, s33, 2\ns_mul_i32 s56, s56, 112\ns_and_b32 s57, s33, 3\ns_lshl_b32 s57, s57, 2\ns_add_u32 s56, s56, s57\ns_lshl_b32 s57, s30, 5\ns_add_u32 s56, s56, s57")
    A("s_mul_i32 s57, s35, 448\ns_add_u32 s56, s56, s57\ns_lshl_b32 s56, s56, 1\nv_lshl_add_u32 v43, v10, 1, s56")
    A("s_cmp_eq_u32 s30, 3\ns_cselect_b32 s18, 0, 0x00020002\ns_or_b32 s18, s18, 0x00010001")
    A(f"s_lshl_b32 s57, s33, 7\ns_lshl_b32 s56, s30, 5\ns_add_u32 s57, s57, s56\ns_lshl_b32 s56, s35, 17\ns_add_u32 s56, s56, s57\ns_add_u32 s14, s56, {PBUF}\ns_add_u32 s15, s14, {32*PSTR}\ns_add_u32 s16, s56, {YBUF}\ns_add_u32 s17, s16, {32*PSTR}")
    A(CHKSEL); A(TAGSEL); A("s_mov_b32 s64, 0xffff0000\nv_mov_b32 v42, 0x80")
    A("s_waitcnt lgkmcnt(0)")
    A(MKTAG); A("v_mov_b32 v55, s32")
    A("s_lshr_b32 s56, s99, 6\ns_add_u32 s56, s56, s31\ns_sub_u32 s56, s56, 4\ns_bitcmp0_b32 s29, 1\ns_cselect_b32 s57, 64, 92\ns_add_u32 s56, s56, s57")
    A("s_lshl_b32 s57, s28, 3\ns_lshr_b32 s58, s29, 1\ns_add_u32 s57, s57, s58\ns_cmp_lt_u32 s29, 16\ns_cselect_b32 s56, s57, s56\ns_lshl_b32 s56, s56, 8")
    A(f"s_and_b32 s57, s29, 1\ns_mul_i32 s57, s57, {PJH}\ns_add_u32 s56, s56, s57\ns_add_u32 s50, s56, {PJF}\ns_add_u32 s51, s56, {PJS}")
    A(f"v_lshrrev_b32 v8, 4, v0\ns_movk_i32 s57, 30720\nv_and_b32 v9, 15, v0\nv_lshlrev_b32 v9, 4, v9\nv_mad_u32_u24 v59, v8, s57, v9\nv_add_u32 v60, {MISC + RED}, v5")
    A("v_mov_b32 v196, 0x7ff00000")
    spin(vM, FL_A, 4, sleep=0)
    A("s_and_b32 s56, s28, 4\ns_add_u32 s56, s56, s29\ns_cmp_lt_u32 s56, 32\ns_cbranch_scc0 L_nopj")
    A("ds_read_b128 v[192:195], v60\ns_waitcnt lgkmcnt(0)")
    for r in range(4): A(f"v_perm_b32 v{192+r}, v{192+r}, v55, {TS[r]}")
    A("buffer_store_dwordx4 v[192:195], v59, s[36:39], s50 offen\nv_mov_b32 v196, v59")
    A("L_nopj:")
    def slowpj():
        if slowcopy: A("s_mov_b64 exec, -1\nbuffer_store_dwordx4 v[192:195], v196, s[36:39], s51 offen sc1")
    if slowat == 'now': slowpj()
    stamp('h', 'pj')
    A("s_sub_u32 s48, s48, s34\nv_add_u32 v46, s48, v46\nv_add_u32 v47, s48, v47\nv_add_u32 v57, s48, v57\nv_add_u32 v58, s48, v58")
    def iss(so):
        A(f"buffer_load_dwordx4 v[8:11], v5, s[36:39], {so} offen sc1\nbuffer_load_dwordx4 v[12:15], v5, s[36:39], {so} offen offset:1024 sc1")
        A(f"buffer_load_dwordx4 v[16:19], v56, s[36:39], {so} offen sc1\nbuffer_load_dwordx4 v[20:23], v56, s[36:39], {so} offen offset:1024 sc1")
        for n, va in enumerate(('v46', 'v47', 'v57', 'v58')): A(f"buffer_load_dwordx4 v[{24+4*n}:{27+4*n}], {va}, s[36:39], {so} offen sc1")
    def chk4(b=8):
        for n in range(4): tagcheck(b+4*n, f"s[{6+2*n}:{7+2*n}]")
        A("s_or_b64 s[6:7], s[6:7], s[8:9]\ns_or_b64 s[10:11], s[10:11], s[12:13]\ns_or_b64 s[6:7], s[6:7], s[10:11]")
    def chk8():
        chk4(24); A("s_and_b64 s[52:53], s[6:7], s[54:55]"); chk4(8); A("s_or_b64 s[6:7], s[6:7], s[52:53]")
        if 'Q' in exp: A("s_mov_b64 s[6:7], 0")
    if qdelay: A(f's_sleep {qdelay}')
    fspoll(iss, chk8, 's34', PJS - PJF, qsleep, slowpj)
    if mask:
        for n in range(32): A(f"v_perm_b32 v{8+n}, v{8+n}, v42, {TS[0]}")
    for n in range(4): A(f"v_pk_add_f32 v[{8+2*n}:{9+2*n}], v[{8+2*n}:{9+2*n}], v[{16+2*n}:{17+2*n}]")
    for n in range(4): A(f"v_cvt_pk_bf16_f32 v{16+n}, v{8+2*n}, v{9+2*n}")
    A("ds_write_b64 v7, v[16:17]\nds_write_b64 v7, v[18:19] offset:512\ns_waitcnt lgkmcnt(0)")
    signal(vM, FL_Q, vOne)
    stamp('h', 'q')
    A("buffer_load_ushort v44, v43, s[40:43], 0 offen")
    def dotouch():
        for so in ('s14', 's15', 's16', 's17')[:touch]: A(f"buffer_load_dword v40, v41, s[36:39], {so} offen")
    if touchat == 'q': dotouch()
    for n in range(4): A(f"v_pk_add_f32 v[{8+2*n}:{9+2*n}], v[{24+2*n}:{25+2*n}], v[{32+2*n}:{33+2*n}]")
    for n in range(4): A(f"v_cvt_pk_bf16_f32 v{16+n}, v{8+2*n}, v{9+2*n}")
    for n in range(4): A(f"v_lshlrev_b32 v{8+2*n}, 16, v{16+n}\nv_and_b32 v{9+2*n}, s64, v{16+n}")
    for e in range(4): A(f"v_cmp_lt_f32 s[{6+2*e}:{7+2*e}], 0, v{8+e}")
    for e in range(4): A(f"v_cndmask_b32 v{16+e}, 0, 1.0, s[{6+2*e}:{7+2*e}]")
    A("v_pk_mul_f32 v[8:9], v[8:9], v[16:17]\nv_pk_mul_f32 v[10:11], v[10:11], v[18:19]\nv_pk_mul_f32 v[8:9], v[8:9], v[12:13]\nv_pk_mul_f32 v[10:11], v[10:11], v[14:15]")
    A("v_cvt_pk_bf16_f32 v12, v8, v9\nv_cvt_pk_bf16_f32 v13, v10, v11")
    A("s_mov_b64 exec, 0xff\nds_write_b64 v48, v[12:13]\ns_waitcnt lgkmcnt(0)")
    for i in range(14):
        m = 0x00010001 << (i + i // 7)
        A(f"s_mov_b32 exec_lo, {hex(m)}\ns_mov_b32 exec_hi, {hex(m)}\nds_read_b128 v[{128+4*i}:{131+4*i}], v49")
    A("s_mov_b64 exec, -1")
    stamp('h', 'h')
    spin(vM, PROG, EV['WD' if wdtail else 'KW'], sleep=1)
    def wdread(tau):
        r = 64 + 4 * (tau % 14)
        for a in range(2): A(f"ds_read_b64_tr_b16 v[{r+2*a}:{r+2*a+1}], v{50 + (tau&3)} offset:{(tau>>2)*128 + a*14336}")
    def wdmma(tau):
        r = 64 + 4 * (tau % 14); d = 56 + 4 * (tau // 14)
        c = f"v[{d}:{d+3}]" if tau % 14 else "0"
        A(f"v_mfma_f32_16x16x32_bf16 v[{d}:{d+3}], v[{r}:{r+3}], v[{128+4*(tau%14)}:{131+4*(tau%14)}], {c}")
    PD = 6
    for tau in range(28 + PD):
        if tau < 28: wdread(tau)
        if tau >= PD:
            A(f"s_waitcnt lgkmcnt({2*min(PD, 27 - (tau - PD))})")
            wdmma(tau - PD)
    for r in range(8): A(f"v_perm_b32 v{56+r}, v{56+r}, v55, {TS[r%4]}")
    if touchat not in ('q', ypubat): spin(vM, PROG, EV[touchat], sleep=2); dotouch()
    if vbar:
        assert ypubat == 'V3' and slowat == 'V3'
        A("s_barrier")
    elif ypubat: spin(vM, PROG, EV[ypubat], sleep=2)
    if touchat == ypubat: dotouch()
    if 'Y' not in exp: A("buffer_store_dwordx4 v[56:59], v54, s[36:39], s49 offen sc1\nbuffer_store_dwordx4 v[60:63], v54, s[36:39], s49 offen offset:1024 sc1")
    if skipslow:
        lk = lab('sk'); lkd = lab('skd')
        A("s_getreg_b32 s56, hwreg(HW_REG_XCC_ID)\ns_and_b32 s56, s56, 15\ns_add_u32 s56, s56, 1\ns_mul_i32 s56, s56, 0x9e3779b1\ns_xor_b32 s53, s32, s56")
        A(f"v_lshrrev_b32 v8, 3, v0\nv_and_b32 v9, 7, v0\nv_lshl_add_u32 v8, v8, 6, v9\ns_movk_i32 s56, {OSTR}\nv_mul_u32_u24 v8, s56, v8")
        A(f"s_mul_i32 s57, s28, {8*OSTR}\ns_add_u32 s57, s57, {OBF + 2048}\ns_mov_b32 s60, {skipslow}\ns_mov_b32 exec_hi, 0\n{lk}:")
        A("buffer_load_dwordx4 v[12:15], v8, s[36:39], s57 offen sc1\ns_waitcnt vmcnt(0)")
        A("v_perm_b32 v1, v13, v12, s66\nv_perm_b32 v4, v15, v14, s67\nv_or_b32 v1, v1, v4\nv_cmp_ne_u32 vcc, s53, v1")
        A(f"s_cbranch_vccz {lkd}\ns_mov_b64 exec, vcc\ns_sleep {sksleep}\ns_sub_u32 s60, s60, 1\ns_cbranch_scc0 {lk}")
        slowpj()
        A(f"{lkd}:\ns_mov_b64 exec, -1")
    elif slowat == ypubat: slowpj()
    elif slowat in EV: spin(vM, PROG, EV[slowat], sleep=2); slowpj()
    stamp('h', 'ypub')
    def reduce4(r):
        A(f"v_permlane32_swap_b32 v{r}, v{r+1}\nv_permlane32_swap_b32 v{r+2}, v{r+3}")
        A(f"v_add_f32 v{r}, v{r}, v{r+1}\nv_add_f32 v{r+2}, v{r+2}, v{r+3}")
        A(f"v_permlane16_swap_b32 v{r}, v{r+2}\nv_add_f32 v{r}, v{r}, v{r+2}")
        for x in (2, 4, 8): A(f"v_add_f32_dpp v{r}, v{r}, v{r} row_ror:{x} row_mask:0xf bank_mask:0xf")
    def simple_poll(issue, check, sleep):
        l = lab('sp'); d = lab('spd')
        A(f"s_mov_b32 s60, {LIMIT}\n{l}:")
        issue(); A("s_waitcnt vmcnt(0)"); check()
        if fake: A("s_mov_b64 s[6:7], 0")
        A(f"s_cmp_eq_u64 s[6:7], 0\ns_cbranch_scc1 {d}")
        if sleep: A(f"s_sleep {sleep}")
        A(f"s_sub_u32 s60, s60, 1\ns_cbranch_scc0 {l}\n{d}:")
    def ld2(r, sa, sb): A(f"buffer_load_dwordx4 v[{r}:{r+3}], v41, s[36:39], {sa} offen sc1\nbuffer_load_dwordx4 v[{r+4}:{r+7}], v41, s[36:39], {sb} offen sc1")
    def ck2(r):
        tagcheck(r, 's[6:7]'); tagcheck(r+4, 'vcc'); A("s_or_b64 vcc, vcc, s[6:7]")
        if fake: A("s_mov_b64 vcc, 0")
    ly = lab('fy'); lys = lab('fys'); ls = lab('fs'); fd = lab('fd')
    if pubbar: A("s_barrier")
    else: spin(vM, FL_PUB, 4, sleep=0)
    if hprio: A(f"s_setprio {hprio}")
    A(f"s_mov_b32 s60, {LIMIT}")
    ld2(8, 's14', 's15')
    if 'Y' in exp: A(f"s_waitcnt vmcnt(0)\ns_branch {lys}")
    A(f"{ly}:")
    ld2(16, 's16', 's17'); A("s_waitcnt vmcnt(0)"); ck2(16)
    A(f"s_cbranch_vccz {lys}\ns_mov_b64 exec, vcc\ns_sub_u32 s60, s60, 1\ns_cbranch_scc0 {ly}\n{lys}:\ns_mov_b64 exec, -1")
    tagcheck(8, 's[6:7]'); tagcheck(12, 's[8:9]')
    l0 = lab('f0')
    A(f"s_or_b64 vcc, s[8:9], s[6:7]\ns_cbranch_vccz {l0}\ns_mov_b64 exec, vcc")
    ld2(8, 's14', 's15')
    A(f"s_mov_b64 exec, -1\n{l0}:")
    if mask:
        for n in range(8): A(f"v_perm_b32 v{16+n}, v{16+n}, v42, {TS[0]}")
    A("v_pk_add_f32 v[16:17], v[16:17], v[20:21]\nv_pk_add_f32 v[18:19], v[18:19], v[22:23]")
    reduce4(16)
    A("v_cvt_pk_bf16_f32 v16, v16, v16\nv_and_b32 v16, s64, v16")
    A(f"v_mul_f32 v17, {hex(fbits(-1.4426950408889634))}, v16\nv_exp_f32 v17, v17\nv_add_f32 v17, 1.0, v17\nv_rcp_f32 v17, v17\nv_mul_f32 v16, v16, v17")
    A("v_cvt_pk_bf16_f32 v16, v16, v16\nv_and_b32 v45, s64, v16\nv_lshlrev_b32 v44, 16, v44")
    stamp('h', 'y')
    if pipe:
        A("s_waitcnt vmcnt(0)"); tagcheck(8, 's[6:7]'); tagcheck(12, 's[8:9]')
        A(f"s_or_b64 vcc, s[8:9], s[6:7]\ns_cbranch_vccz {fd}\ns_mov_b64 exec, vcc")
        ld2(8, 's14', 's15')
        if pgap: A(f"s_sleep {pgap}")
        ld2(8, 's14', 's15')
    A(f"{ls}:\ns_waitcnt vmcnt({2 if pipe else 0})")
    tagcheck(8, 's[6:7]'); tagcheck(12, 's[8:9]')
    A("s_or_b64 vcc, s[8:9], s[6:7]")
    if fake: A("s_mov_b64 vcc, 0")
    A(f"s_cbranch_vccz {fd}")
    if fsleep: A(f"s_sleep {fsleep}")
    A("s_mov_b64 exec, vcc")
    ld2(8, 's14', 's15')
    A(f"s_sub_u32 s60, s60, 1\ns_cbranch_scc0 {ls}\ns_waitcnt vmcnt(0)")
    A(f"{fd}:\ns_mov_b64 exec, -1")
    if mask:
        for n in range(8): A(f"v_perm_b32 v{24+n}, v{8+n}, v42, {TS[0]}")
    A("v_pk_add_f32 v[24:25], v[24:25], v[28:29]\nv_pk_add_f32 v[26:27], v[26:27], v[30:31]")
    stamp('h', 'fgat')
    reduce4(24)
    A("v_cvt_pk_bf16_f32 v24, v24, v24\nv_and_b32 v24, s64, v24\nv_mul_f32 v24, v24, v45\nv_cvt_pk_bf16_f32 v24, v24, v24\nv_and_b32 v24, s64, v24")
    A("v_add_f32 v24, v24, v44\nv_cvt_pk_bf16_f32 v24, v24, v24")
    A("s_mov_b32 exec_lo, s18\ns_mov_b32 exec_hi, s18")
    A("buffer_store_short v24, v43, s[44:47], 0 offen")
    stamp('h', 'end')
    dump_stamps('h')
    A("s_endpgm")
    A("L_epoch:\ns_mov_b64 exec, -1")
    A(f"v_lshlrev_b32 v5, 11, v0\ns_mov_b32 s14, {PBUF}\ns_mov_b32 s15, {PBUF + 64*PSTR}\ns_mov_b32 s16, {PBUF + 128*PSTR}\ns_mov_b32 s17, {PBUF + 192*PSTR}")
    def iss():
        for n in range(4): A(f"buffer_load_dwordx4 v[{8+4*n}:{11+4*n}], v5, s[36:39], s{14+n} offen sc1")
    def chk():
        for n in range(4): tagcheck(8+4*n, f"s[{6+2*n}:{7+2*n}]")
        A("s_or_b64 s[6:7], s[6:7], s[8:9]\ns_or_b64 s[10:11], s[10:11], s[12:13]\ns_or_b64 s[6:7], s[6:7], s[10:11]")
    simple_poll(iss, chk, 1)
    A("v_mov_b32 v8, s32\nv_mov_b32 v9, 0\ns_mov_b64 exec, 1")
    A("buffer_store_dword v8, v9, s[36:39], 0 offen sc1")
    A("L_end:\ns_endpgm\nL_codeend:")
    A('.section .rodata,"a"\n.p2align 6')
    A(f".amdhsa_kernel {NAME}_kernel")
    A(".amdhsa_next_free_vgpr 256\n.amdhsa_next_free_sgpr 102\n.amdhsa_accum_offset 256\n.amdhsa_group_segment_fixed_size 0\n.amdhsa_kernarg_size 96\n.amdhsa_user_sgpr_count 2\n.amdhsa_user_sgpr_kernarg_segment_ptr 1\n.amdhsa_system_sgpr_workgroup_id_x 1\n.end_amdhsa_kernel")
    return A.finalize(), stamps

if __name__ == "__main__":
    txt, st = gen()
    open(sys.argv[1] if len(sys.argv) > 1 else "k21.s", "w").write(txt)
```
